```python
import torch

def _softmax(x, axis=-1):
    return torch.softmax(x, dim=axis)
def _gelu(x):
    return torch.nn.functional.gelu(x, approximate="tanh")
def _silu(x):
    return torch.nn.functional.silu(x)
def _sigmoid(x):
    return torch.sigmoid(x)
def _layernorm(x, axis=-1, eps=1e-5):
    m = x.mean(dim=axis, keepdim=True)
    v = x.var(dim=axis, keepdim=True, unbiased=False)
    return (x - m) / torch.sqrt(v + eps)
def _scatter_add(tgt, idx, src, axis=0):
    return tgt.clone().index_add_(axis, idx, src)
def _segment_sum(src, seg, n):
    out = torch.zeros((n,) + src.shape[1:], dtype=src.dtype)
    return out.index_add_(0, seg, src)
def _pad(x, pw):
    flat = tuple(v for pair in reversed(pw) for v in pair)
    return torch.nn.functional.pad(x, flat)

kernel_name = 'parallel_sum__compressed_kv_cla__geglu_ffn__prompt'

def setup_inputs():

    _w = (lambda a: (lambda t: t.to(torch.bfloat16) if t.is_floating_point() else t)(torch.as_tensor(a)))
    def _A_setup():
        B, H, Sq, Sk, D, M = 1, 32, 2048, 2048, 128, 640
        Dc = 4 * D
        return {
            "x": _w((lambda *s: torch.randn(*s, dtype=torch.bfloat16) * 0.05)(B, Sq, M)),
            "c_kv": _w((lambda *s: torch.randn(*s, dtype=torch.bfloat16) * 1.6)(B, Sk, Dc)),
            "w_q": _w((lambda *s: torch.randn(*s, dtype=torch.bfloat16) * 0.8)(M, H, D) * (M ** -0.5)),
            "w_uk": _w((lambda *s: torch.randn(*s, dtype=torch.bfloat16) * 0.8)(Dc, H, D) * (Dc ** -0.5)),
            "w_uv": _w((lambda *s: torch.randn(*s, dtype=torch.bfloat16) * 1.6)(Dc, H, D) * (Dc ** -0.5)),
            "w_o": _w((lambda *s: torch.randn(*s, dtype=torch.bfloat16) * 1.6)(H, D, M) * ((H * D) ** -0.5)),
        }
    _A_in = _A_setup()

    def _B_setup():
        B, S, D, F = 1, 2048, 640, 1728
        return {
            "x": _w((lambda *s: torch.randn(*s, dtype=torch.bfloat16) * 0.05)(B, S, D)),
            "w_gate": _w((lambda *s: torch.randn(*s, dtype=torch.bfloat16) * 0.05)(D, F)),
            "w_up": _w((lambda *s: torch.randn(*s, dtype=torch.bfloat16) * 0.05)(D, F)),
            "w_down": _w((lambda *s: torch.randn(*s, dtype=torch.bfloat16) * 0.05)(F, D)),
        }
    _B_in = _B_setup()

    return {
        "A_x": _A_in["x"],
        "A_c_kv": _A_in["c_kv"],
        "A_w_q": _A_in["w_q"],
        "A_w_uk": _A_in["w_uk"],
        "A_w_uv": _A_in["w_uv"],
        "A_w_o": _A_in["w_o"],
        "B_x": _B_in["x"],
        "B_w_gate": _B_in["w_gate"],
        "B_w_up": _B_in["w_up"],
        "B_w_down": _B_in["w_down"],
    }

def reference(A_x, A_c_kv, A_w_q, A_w_uk, A_w_uv, A_w_o, B_x, B_w_gate, B_w_up, B_w_down):
    def _A_ref(x, c_kv, w_q, w_uk, w_uv, w_o):
        B, Sq, M = x.shape[0], x.shape[1], x.shape[2]
        Sk = c_kv.shape[1]
        H, D = w_q.shape[1], w_q.shape[2]
        q = torch.einsum("bqm,mhd->bhqd", x, w_q)
        k = torch.einsum("bkc,chd->bhkd", c_kv, w_uk)
        v = torch.einsum("bkc,chd->bhkd", c_kv, w_uv)
        scores = torch.einsum("bhqd,bhkd->bhqk", q, k) * (D ** -0.5)
        off = Sk - Sq
        qi = torch.arange(Sq)[:, None]
        kj = torch.arange(Sk)[None, :]
        cmask = kj <= (qi + off)
        scores = torch.where(cmask[None, None], scores, -1e9)
        p = _softmax(scores, axis=-1)
        ctx = torch.einsum("bhqk,bhkd->bhqd", p, v)
        return torch.einsum("bhqd,hdm->bqm", ctx, w_o)

    def _B_ref(x, w_gate, w_up, w_down):
        return (_gelu(x @ w_gate) * (x @ w_up)) @ w_down

    x = A_x
    xn = _layernorm(x, axis=-1)
    return x + _A_ref(xn, A_c_kv, A_w_q, A_w_uk, A_w_uv, A_w_o) + _B_ref(xn, B_w_gate, B_w_up, B_w_down)
```

```python
class Asm:
    def __init__(self):
        self.lines = []
        self.nlabel = 0
    def __call__(self, s=""):
        for l in s.split("\n"):
            self.lines.append(l)
    def label(self, name):
        self.lines.append(name + ":")
    def newlabel(self, base="L"):
        self.nlabel += 1
        return "%s_%d" % (base, self.nlabel)
    def text(self):
        return "\n".join(self.lines) + "\n"

def vr(b, n=1, p="v"):
    return "%s%d" % (p, b) if n == 1 else "%s[%d:%d]" % (p, b, b + n - 1)
def ar(b, n=1): return vr(b, n, "a")
def sr(b, n=1): return vr(b, n, "s")

def kernel_header(name):
    return (".globl %s\n.p2align 8\n.type %s,@function\n%s:\n" % (name, name, name))

def kernel_desc(name, vgpr, accum, sgpr=102, kernarg=104):
    return """.amdhsa_kernel %s
  .amdhsa_next_free_vgpr %d
  .amdhsa_next_free_sgpr %d
  .amdhsa_accum_offset %d
  .amdhsa_group_segment_fixed_size 0
  .amdhsa_kernarg_size %d
  .amdhsa_user_sgpr_count 2
  .amdhsa_user_sgpr_kernarg_segment_ptr 1
  .amdhsa_system_sgpr_workgroup_id_x 1
.end_amdhsa_kernel
""" % (name, vgpr, sgpr, accum, kernarg)
```

```python
import sys, struct, math
from asmlib import *

NAME = "parallel_sum__compressed_kv_cla__geglu_ffn__prompt"
KN = NAME + "_kernel"
def f2u(x): return struct.unpack("<I", struct.pack("<f", x))[0]
def fh(x): return "0x%08x" % f2u(x)

XN_OFF, XN_SZ = 0, 2048 * 640 * 2
FL_OFF, FL_SZ = 3 << 20, 4096
KV_OFF, KV_SZ = 4 << 20, 32 << 20
HB_RT = 54 * 8192
HB_OFF, HB_SZ = 36 << 20, 16 * HB_RT
CX_RT = 128 * 8192
CX_OFF, CX_SZ = 44 << 20, 16 * CX_RT
EX_OFF, EX_SZ = 60 << 20, 64 * 4 * 3 * 20480
ST_OFF = 76 << 20
LDS_TOTAL = 163840
LFLAG = LDS_TOTAL - 16

sX, sCKV, sWQ, sWUK, sWUV, sWO, sWG, sWU, sWD, sOUT, sDBG, sWS = 4, 6, 8, 10, 12, 14, 18, 20, 22, 24, 26, 28
sW, sH, sI = 30, 31, 3
R0, R1, R2, R3, RF = 32, 36, 40, 44, 48
T0, T1, T2, T3 = 52, 53, 54, 55
SUB = 4224
WSTEP = 4 * SUB
OPT = {}
STAMP = False
SC = " sc1"

def stamp(a, k, v=15):
    if not STAMP: return
    a("s_memrealtime s[100:101]\ns_waitcnt lgkmcnt(0)\nv_writelane_b32 v%d, s100, %d" % (v, 2 * k))
    a("s_memtime s[100:101]\ns_waitcnt lgkmcnt(0)\nv_writelane_b32 v%d, s100, %d" % (v, 2 * k + 1))
def stamp_out(a, v=15):
    if not STAMP: return
    srd(a, R0, sWS, ST_OFF, 1 << 20)
    a("s_lshl_b32 s%d, s2, 2\ns_add_u32 s%d, s%d, s%d\ns_lshl_b32 s%d, s%d, 8" % (T0, T0, T0, sW, T0, T0))
    a("v_lshlrev_b32 v1, 2, v0")
    a("buffer_store_dword v%d, v1, s[%d:%d], s%d offen" % (v, R0, R0 + 3, T0))

MF = "v_mfma_f32_16x16x32_bf16"
def reg(r, n=1): return ar(r - 256, n) if r >= 256 else vr(r, n)
A = lambda k: 256 + k
def mfma(d, a_, b_, c):
    return "%s %s, %s, %s, %s" % (MF, reg(d, 4), reg(a_, 4), reg(b_, 4), "0" if c is None else reg(c, 4))
def R(r): return "s[%d:%d]" % (r, r + 3)

class L(list):
    def __call__(self, s):
        self.extend(s.split("\n"))

def srd(a, r, ptr, off=0, size=0, off_s=None):
    if off:
        a("s_add_u32 s%d, s%d, 0x%x" % (r, ptr, off)); a("s_addc_u32 s%d, s%d, 0" % (r + 1, ptr + 1))
    else:
        a("s_mov_b32 s%d, s%d" % (r, ptr)); a("s_mov_b32 s%d, s%d" % (r + 1, ptr + 1))
    if off_s is not None:
        a("s_add_u32 s%d, s%d, s%d" % (r, r, off_s)); a("s_addc_u32 s%d, s%d, 0" % (r + 1, r + 1))
    a("s_mov_b32 s%d, %s" % (r + 2, size if isinstance(size, str) else "0x%x" % size))
    a("s_mov_b32 s%d, 0x20000" % (r + 3))

def stream(a, mf, gaps):
    assert len(gaps) <= len(mf), (len(gaps), len(mf))
    for k, m in enumerate(mf):
        a(m)
        if k < len(gaps):
            for x in gaps[k]: a(x)

def weave(a, lines, groups, lo=0.0, hi=1.0):
    n, m = len(lines), len(groups)
    at = {}
    for k, g in enumerate(groups): at.setdefault(min(n - 1, int((lo + (hi - lo) * k / max(m, 1)) * n)), []).extend(g)
    for k, x in enumerate(lines):
        for y in at.get(k, []): a(y)
        a(x)

def flat_dma(lst, tail=()):
    g = []
    for pre, ld in lst:
        x = list(pre)
        if x and "m0" in x[-1]: x.append("s_nop 0")
        g.append(x + [ld])
    g[-1] += list(tail)
    return g

def w_lane_parts(a, vWD, vRW, stride, t0, t1):
    a("v_lshrrev_b32 v%d, 5, v0" % t0)
    a("v_bfe_u32 v%d, v0, 2, 2" % t1)
    a("v_lshl_add_u32 v%d, v%d, 2, v%d" % (t0, t0, t1))
    a("v_mul_u32_u24 v%d, %s, v%d" % (vWD, stride, t0))
    a("v_bfe_u32 v%d, v0, 4, 1" % t0)
    a("v_lshl_add_u32 v%d, v%d, 6, v%d" % (vWD, t0, vWD))
    a("v_and_b32 v%d, 3, v0" % t0)
    a("v_lshl_add_u32 v%d, v%d, 4, v%d" % (vWD, t0, vWD))
    if vRW is not None:
        a("v_lshlrev_b32 v%d, 3, v%d" % (vRW, t0))
        a("v_lshl_add_u32 v%d, v%d, 6, v%d" % (vRW, t1, vRW))
        a("v_lshrrev_b32 v%d, 4, v0" % t0)
        a("v_mul_u32_u24 v%d, 1056, v%d" % (t0, t0))
        a("v_add_u32 v%d, v%d, v%d" % (vRW, vRW, t0))

def tr_reads(dst, vRW, base, nbl):
    off = base + (nbl >> 1) * 256 + (nbl & 1) * 32
    return ["ds_read_b64_tr_b16 %s, v%d offset:%d" % (reg(dst, 2), vRW, off),
            "ds_read_b64_tr_b16 %s, v%d offset:%d" % (reg(dst + 2, 2), vRW, off + 512)]

def pack_pair(a, b0, b1, tmp):
    src = []
    for k, b in enumerate((b0, b1)):
        if b >= 256:
            for r in range(4): a("v_accvgpr_read_b32 v%d, %s" % (tmp + r, reg(b + r)))
            src.append(tmp)
        else: src.append(b)
    d = src[0]
    a("v_cvt_pk_bf16_f32 v%d, v%d, v%d" % (d, src[0], src[0] + 1))
    a("v_cvt_pk_bf16_f32 v%d, v%d, v%d" % (d + 1, src[0] + 2, src[0] + 3))
    a("v_cvt_pk_bf16_f32 v%d, v%d, v%d" % (d + 2, src[1], src[1] + 1))
    a("v_cvt_pk_bf16_f32 v%d, v%d, v%d" % (d + 3, src[1] + 2, src[1] + 3))
    return d

def accreg(idx): return 16 + 4 * idx if idx < 60 else A(240 + 4 * (idx - 60))

def publish(a, soff, imm, tag, v=8):
    a("s_cmp_lg_u32 s%d, 0" % sW)
    a("s_cbranch_scc1 L%s_np" % tag)
    a("v_mov_b32 v%d, 1" % v)
    a("s_mov_b64 exec, 1")
    a("buffer_store_dword v%d, off, %s, s%d offset:%d sc1" % (v, R(RF), soff, imm))
    a("s_mov_b64 exec, -1")
    a("L%s_np:" % tag)

def spin(a, o, load, regs, want, tag, first=True):
    def check(x):
        for k in range(1, len(regs)): x("v_and_b32 v%d, v%d, v%d" % (regs[0], regs[0], regs[k]))
        x("v_cmp_ne_u32 vcc, %s, v%d" % (want, regs[0]))
    if first:
        check(a)
        a("s_mov_b32 s%d, 0x40000" % T3)
        a("s_nop 0")
        a("s_cbranch_vccnz L%s_ld" % tag)
    else:
        a("s_mov_b32 s%d, 0x40000" % T3)
        o = a
    o("L%s_ld:" % tag)
    o(load)
    o("s_waitcnt vmcnt(0)")
    check(o)
    o("s_sub_u32 s%d, s%d, 1" % (T3, T3))
    o("s_cbranch_scc1 L%s_ok" % tag)
    o("s_cbranch_vccnz L%s_ld" % tag)
    if first: o("s_branch L%s_ok" % tag)
    a("L%s_ok:" % tag)
    if OPT.get("inv"):
        a("buffer_inv sc1")
        a("s_waitcnt vmcnt(0)")

def spread(n, groups, start=0):
    groups = sorted(groups, key=lambda x: x[0])
    gaps = [[] for _ in range(n)]
    m = len(groups)
    last = start - 1
    w = n - start
    for k, (pos, ins) in enumerate(groups):
        if m <= w:
            g = max(start + int(pos * w), last + 1)
            g = min(g, n - (m - k))
        else:
            g = start + (k * w) // m
        gaps[g] += ins
        last = g
    return gaps

def can_ride(gap):
    kinds = [x.split("_")[0] for x in gap]
    if "buffer" in kinds: return False
    if all(k == "s" for k in kinds): return len(gap) < 3
    if "s" in kinds: return False
    if "ds" in kinds: return len(gap) == 1
    return True

def ride(gaps, ins, lo, hi, backwards=True):
    rng = list(range(hi, lo - 1, -1) if backwards else range(lo, hi + 1))
    g = next((g for g in rng if can_ride(gaps[g])), None)
    if g is None:
        g = next((g for g in rng if not any(x.startswith("buffer") for x in gaps[g])), hi if backwards else lo)
    k = 0
    while k < len(gaps[g]) and gaps[g][k].startswith("s_"): k += 1
    gaps[g].insert(k, ins)
    return g

def kernel(a):
    ool = L()
    a(kernel_header(KN))
    a("s_cmp_ge_u32 s2, 256")
    a("s_cbranch_scc1 Lend")
    a("s_load_dwordx16 s[4:19], s[0:1], 0")
    a("s_load_dwordx8 s[20:27], s[0:1], 64")
    a("s_load_dwordx2 s[28:29], s[0:1], 96")
    a("v_lshrrev_b32 v1, 6, v0")
    a("v_and_b32 v0, 63, v0")
    a("v_readfirstlane_b32 s%d, v1" % sW)
    a("s_and_b32 s%d, s2, 31" % sH)
    a("s_lshr_b32 s%d, s2, 5" % sI)
    vL16, vA0, vA1, vWD, vRA0, vRA1, vRW = 1, 2, 3, 4, 5, 6, 7
    sAo, sAm, sWo, sWm, sDl, sDm, sCnt, sSt8, sEvt = 64, 65, 66, 67, 68, 69, 63, 70, 71
    sFK, sFW = 16, 17
    LA, LW, LLN = 0, 65536, 65536 + 4 * WSTEP
    rA, rW, rX, rO = R0, R1, R2, R3
    a("v_lshrrev_b32 v8, 5, v0")
    a("v_mul_u32_u24 v8, 1280, v8")
    a("v_and_b32 v9, 31, v0")
    a("v_lshl_add_u32 v8, v9, 3, v8")
    a("s_lshl_b32 s%d, s2, 2" % T2)
    a("s_add_u32 s%d, s%d, s%d" % (T2, T2, sW))
    a("s_mul_i32 s%d, s%d, 2560" % (T2, T2))
    w_lane_parts(a, vWD, vRW, "0x2000", 10, 11)
    a("v_lshlrev_b32 v%d, 4, v0" % vL16)
    a("v_lshrrev_b32 v10, 4, v0")
    a("v_and_b32 v11, 7, v0")
    a("v_xor_b32 v10, v10, v11")
    a("v_lshlrev_b32 v10, 4, v10")
    a("v_lshrrev_b32 v11, 3, v0")
    a("v_lshl_add_u32 v%d, v11, 10, v10" % vA0)
    a("v_xor_b32 v%d, 64, v%d" % (vA1, vA0))
    a("s_and_b32 s%d, s%d, 1" % (T0, sW))
    a("s_lshl_b32 s%d, s%d, 7" % (sWo, T0))
    a("s_lshl_b32 s%d, s%d, 8" % (T1, sH))
    a("s_add_u32 s%d, s%d, s%d" % (sWo, sWo, T1))
    a("s_mul_i32 s%d, s%d, %d" % (sWm, sW, SUB))
    a("s_add_u32 s%d, s%d, %d" % (sWm, sWm, LW))
    a("s_mul_i32 s%d, s%d, %d" % (T1, T0, SUB))
    a("s_add_u32 s%d, s%d, %d" % (T1, T1, LW))
    a("v_add_u32 v%d, s%d, v%d" % (vRW, T1, vRW))
    a("s_lshl_b32 s%d, s%d, 18" % (sAo, sI))
    a("s_lshl_b32 s%d, s%d, 16" % (T1, sW))
    a("s_add_u32 s%d, s%d, s%d" % (sAo, sAo, T1))
    a("s_lshl_b32 s%d, s%d, 13" % (sAm, sW))
    a("s_mov_b32 s%d, 0x10000" % sSt8)
    a("s_waitcnt lgkmcnt(0)")
    stamp(a, 0)
    srd(a, rX, sX, size=XN_SZ)
    for j in range(5):
        a("buffer_load_dwordx2 %s, v8, %s, s%d offen offset:%d" % (vr(16 + 2 * j, 2), R(rX), T2, j * 256))
    srd(a, rA, sCKV, size=2048 * 1024)
    a("s_cmp_lt_u32 s%d, 2" % sW)
    a("s_cselect_b32 s%d, s%d, s%d" % (rW, sWUK, sWUV))
    a("s_cselect_b32 s%d, s%d, s%d" % (rW + 1, sWUK + 1, sWUV + 1))
    a("s_mov_b32 s%d, 0x%x" % (rW + 2, 512 * 8192))
    a("s_mov_b32 s%d, 0x20000" % (rW + 3))
    def dmaW(slot=0):
        out = []
        for g in range(4):
            pre = ["s_add_u32 m0, s%d, %d" % (sWm, slot * WSTEP + g * 1056)]
            if g: pre.append("s_add_u32 s%d, s%d, s%d" % (sWo, sWo, sSt8))
            out.append((pre, "buffer_load_dwordx4 v%d, %s, s%d offen lds" % (vWD, R(rW), sWo)))
        return out, ["s_add_u32 s%d, s%d, s%d" % (sWo, sWo, sSt8)]
    def dmaA():
        out = []
        for p in range(8):
            pre = ["s_add_u32 m0, s%d, %d" % (sAm, p * 1024)]
            if p: pre.append("s_add_u32 s%d, s%d, 0x2000" % (sAo, sAo))
            out.append((pre, "buffer_load_dwordx4 v%d, %s, s%d offen lds" % (vA1 if p & 1 else vA0, R(rA), sAo)))
        return out, ["s_sub_u32 s%d, s%d, %d" % (sAo, sAo, 7 * 8192 - 128), "s_xor_b32 s%d, s%d, 0x8000" % (sAm, sAm)]
    for g in flat_dma(*dmaW(0)) + flat_dma(*dmaA()):
        for x in g: a(x)
    later = flat_dma(*dmaW(1)) + flat_dma(*dmaW(2)) + flat_dma(*dmaA()) + flat_dma(*dmaW(3))
    srd(a, RF, sWS, FL_OFF, FL_SZ)
    srd(a, rO, sDBG, size=256)
    a("s_lshl_b32 s%d, s%d, 3" % (sFK, sH))
    a("s_add_u32 s%d, s%d, s%d" % (sFK, sFK, sI))
    a("s_lshl_b32 s%d, s%d, 2" % (sFK, sFK))
    a("s_lshl_b32 s%d, s2, 2" % sFW)
    a("s_cmp_lg_u32 s%d, 3" % sW)
    a("s_cbranch_scc1 Lnoclr")
    a("v_mov_b32 v9, 0")
    a("s_mov_b64 exec, 1")
    a("buffer_store_dword v9, off, %s, s%d sc1" % (R(RF), sFK))
    for k in (1, 2, 3): a("buffer_store_dword v9, off, %s, s%d offset:%d sc1" % (R(RF), sFW, k * 1024))
    a("s_mov_b64 exec, -1")
    a("s_waitcnt vmcnt(16)")
    a("s_branch Lclr")
    a.label("Lnoclr")
    a("s_waitcnt vmcnt(12)")
    a.label("Lclr")
    stamp(a, 1)
    b = L()
    X, D = 26, 46
    for k in range(10):
        b("v_lshlrev_b32 v%d, 16, v%d" % (X + 2 * k, 16 + k))
        b("v_and_b32 v%d, 0xffff0000, v%d" % (X + 2 * k + 1, 16 + k))
    def reduce32(v, t):
        for n in (8, 4, 2, 1):
            b("s_nop 1")
            b("v_add_f32_dpp v%d, v%d, v%d row_ror:%d row_mask:0xf bank_mask:0xf" % (v, v, v, n))
        b("v_mov_b32 v%d, v%d" % (t, v))
        b("s_nop 1")
        b("v_permlane16_swap_b32 v%d, v%d" % (v, t))
        b("v_add_f32 v%d, v%d, v%d" % (v, v, t))
        b("v_mul_f32 v%d, %s, v%d" % (v, fh(1.0 / 640), v))
    b("v_add_f32 v8, v%d, v%d" % (X, X + 1))
    b("v_add_f32 v9, v%d, v%d" % (X + 2, X + 3))
    for k in range(4, 20, 2):
        b("v_add_f32 v8, v8, v%d" % (X + k)); b("v_add_f32 v9, v9, v%d" % (X + k + 1))
    b("v_add_f32 v8, v8, v9")
    reduce32(8, 9)
    for k in range(20): b("v_sub_f32 v%d, v%d, v8" % (D + k, X + k))
    b("v_mul_f32 v10, v%d, v%d" % (D, D)); b("v_mul_f32 v11, v%d, v%d" % (D + 1, D + 1))
    for k in range(2, 20, 2):
        b("v_fmac_f32 v10, v%d, v%d" % (D + k, D + k)); b("v_fmac_f32 v11, v%d, v%d" % (D + k + 1, D + k + 1))
    b("v_add_f32 v10, v10, v11")
    reduce32(10, 11)
    b("v_cvt_pk_bf16_f32 v9, v8, v10")
    b("v_lshlrev_b32 v8, 16, v9")
    b("v_and_b32 v10, 0xffff0000, v9")
    b("v_add_f32 v10, %s, v10" % fh(1e-5))
    b("v_cvt_pk_bf16_f32 v10, v10, v10")
    b("v_lshlrev_b32 v10, 16, v10")
    b("v_sqrt_f32 v10, v10")
    for k in range(20): b("v_sub_f32 v%d, v%d, v8" % (D + k, X + k))
    b("v_cvt_pk_bf16_f32 v10, v10, v10")
    b("v_lshlrev_b32 v10, 16, v10")
    b("v_rcp_f32 v10, v10")
    for k in range(10): b("v_cvt_pk_bf16_f32 v%d, v%d, v%d" % (16 + k, D + 2 * k, D + 2 * k + 1))
    for k in range(10):
        b("v_lshlrev_b32 v%d, 16, v%d" % (X + 2 * k, 16 + k))
        b("v_and_b32 v%d, 0xffff0000, v%d" % (X + 2 * k + 1, 16 + k))
    for k in range(20): b("v_mul_f32 v%d, v%d, v10" % (X + k, X + k))
    for k in range(10): b("v_cvt_pk_bf16_f32 v%d, v%d, v%d" % (16 + k, X + 2 * k, X + 2 * k + 1))
    b("v_bfe_u32 v8, v0, 1, 4")
    b("v_lshlrev_b32 v8, 7, v8")
    b("v_and_b32 v9, 1, v0")
    b("v_lshl_add_u32 v8, v9, 3, v8")
    b("v_lshrrev_b32 v9, 5, v0")
    b("v_lshl_add_u32 v8, v9, 4, v8")
    b("s_lshl_b32 s%d, s%d, 5" % (T0, sW))
    b("s_add_u32 s%d, s%d, %d" % (T0, T0, LLN))
    b("v_add_u32 v8, s%d, v8" % T0)
    for j in range(5): b("ds_write_b64 v8, %s offset:%d" % (vr(16 + 2 * j, 2), j * 2048))
    b("v_and_b32 v10, 15, v0")
    b("v_lshrrev_b32 v11, 1, v10")
    b("v_lshrrev_b32 v12, 4, v0")
    b("v_xor_b32 v11, v11, v12")
    b("v_lshlrev_b32 v11, 4, v11")
    b("v_lshl_add_u32 v11, v10, 7, v11")
    b("s_lshr_b32 s%d, s%d, 1" % (T1, sW))
    b("s_lshl_b32 s%d, s%d, 14" % (T1, T1))
    b("v_add_u32 v%d, s%d, v11" % (vRA0, T1))
    b("v_xor_b32 v%d, 64, v%d" % (vRA1, vRA0))
    weave(a, b, later)
    srd(a, rX, sWS, XN_OFF, XN_SZ)
    a("s_lshl_b32 s%d, s%d, 10" % (T0, sW))
    a("s_add_u32 s%d, s%d, %d" % (T0, T0, LLN))
    a("v_add_u32 v8, s%d, v%d" % (T0, vL16))
    a("v_lshrrev_b32 v9, 3, v0")
    a("v_lshlrev_b32 v9, 8, v9")
    a("v_and_b32 v10, 7, v0")
    a("v_lshl_add_u32 v9, v10, 4, v9")
    a("s_lshr_b32 s%d, s2, 1" % T0)
    a("s_mul_i32 s%d, s%d, 20480" % (T0, T0))
    a("s_and_b32 s%d, s2, 1" % T1)
    a("s_lshl_b32 s%d, s%d, 7" % (T1, T1))
    a("s_add_u32 s%d, s%d, s%d" % (T0, T0, T1))
    a("s_lshl_b32 s%d, s%d, 11" % (T1, sW))
    a("s_add_u32 s%d, s%d, s%d" % (T0, T0, T1))
    a("s_add_u32 s%d, s%d, 8192" % (T1, T0))
    a("s_add_u32 s%d, s%d, 16384" % (T2, T0))
    a("s_cmp_lt_u32 s%d, 2" % sW)
    a("s_cselect_b32 s%d, s%d, 0x%x" % (T2, T2, XN_SZ))
    a("s_cselect_b32 s%d, 0x2000, 0" % T3)
    a("v_add_u32 v10, s%d, v8" % T3)
    a("s_waitcnt vmcnt(20) lgkmcnt(0)")
    a("s_barrier")
    FA = lambda p, rb: A(64 * p + 4 * rb)
    FW = lambda p, j: A(64 * p + 32 + 4 * j)
    def reads1(p, vra):
        g = []
        for k in range(4):
            g.append(["ds_read_b128 %s, v%d offset:%d" % (reg(FA(p, rb), 4), vra, LA + rb * 2048) for rb in (2 * k, 2 * k + 1)])
            g.append(tr_reads(FW(p, 2 * k), vRW, (k >> 1) * 2 * SUB, (2 * k) & 3))
            g.append(tr_reads(FW(p, 2 * k + 1), vRW, (k >> 1) * 2 * SUB, (2 * k + 1) & 3))
        return g
    XS = A(128)
    a("ds_read_b128 %s, v8" % reg(XS, 4))
    a("ds_read_b128 %s, v8 offset:4096" % reg(XS + 4, 4))
    a("ds_read_b128 %s, v10" % reg(XS + 8, 4))
    for grp in reads1(0, vRA0):
        for x in grp: a(x)
    a("s_mov_b32 s%d, %d" % (sDl, WSTEP))
    a("s_mov_b32 s%d, %d" % (sDm, WSTEP))
    a("s_mov_b32 s%d, 0" % sCnt)
    a("s_mov_b32 s%d, 2" % sEvt)
    a("v_xor_b32 v%d, 0x8000, v%d" % (vRA0, vRA0))
    a("v_add_u32 v%d, %d, v%d" % (vRW, WSTEP, vRW))
    a("s_waitcnt vmcnt(16) lgkmcnt(0)")
    a("s_barrier")
    stamp(a, 2)
    XORC = WSTEP ^ ((-3 * WSTEP) & 0xFFFFFFFF)
    def step1(p, first=False):
        mf = []
        for rb in range(8):
            for j in (range(8) if rb % 2 == 0 else range(7, -1, -1)):
                d = accreg(rb * 8 + j)
                c = None if first else d
                mf.append(mfma(d, FW(p, j), FA(p, rb), c) if j < 4 else mfma(d, FA(p, rb), FW(p, j), c))
        gaps = [[] for _ in range(64)]
        rd = reads1(1 - p, vRA1 if p == 0 else vRA0)
        dm, tails = [], []
        if p == 1:
            l, t = dmaA(); dm += l; tails.append((8, t))
        l, t = dmaW(); dm += l; tails.append((len(dm), t))
        for k, grp in enumerate(rd): gaps[4 * k + 2] += grp
        sp = 4 if p == 1 else 12
        for k, (pre, ld) in enumerate(dm):
            gaps[sp * k] += pre; gaps[sp * k + 1].append(ld)
        for n, t in tails: gaps[sp * (n - 1) + 3] += t
        if first:
            for k, t in enumerate((T0, T1, T2)):
                gaps[5 + 12 * k].append("buffer_store_dwordx4 %s, v9, %s, s%d offen%s" % (reg(XS + 4 * k, 4), R(rX), t, SC))
        if p == 0:
            gaps[52] += ["s_add_u32 s%d, s%d, %d" % (sWm, sWm, WSTEP), "v_add_u32 v%d, s%d, v%d" % (vRW, sDl, vRW), "v_xor_b32 v%d, 0x8000, v%d" % (vRA1, vRA1)]
            gaps[53] += ["s_xor_b32 s%d, s%d, 0x%x" % (sDl, sDl, XORC), "s_cmp_lt_u32 s%d, 6" % sCnt, "s_cselect_b32 s%d, 0x%x, 0" % (rA + 2, 2048 * 1024)]
            gaps[63] += ["s_waitcnt vmcnt(%d) lgkmcnt(0)" % (11 if first else 8), "s_barrier"]
        else:
            gaps[52] += ["s_add_u32 s%d, s%d, s%d" % (sWm, sWm, sDm), "v_add_u32 v%d, %d, v%d" % (vRW, WSTEP, vRW), "v_xor_b32 v%d, 0x8000, v%d" % (vRA0, vRA0)]
            gaps[53] += ["s_xor_b32 s%d, s%d, 0x%x" % (sDm, sDm, XORC), "s_add_u32 s%d, s%d, 1" % (sCnt, sCnt)]
            gaps[54] += ["s_cmp_eq_u32 s%d, s%d" % (sCnt, sEvt), "s_cbranch_scc1 Lp1evt", "Lp1ret:"]
            gaps[55] += ["s_cmp_lt_u32 s%d, 8" % sCnt]
            gaps[63] += ["s_waitcnt vmcnt(16) lgkmcnt(0)", "s_barrier"]
        stream(a, mf, gaps)
    step1(0, True)
    a("s_branch Lp1odd")
    a(".p2align 6")
    a.label("Lp1even")
    step1(0)
    a.label("Lp1odd")
    step1(1)
    a("s_cbranch_scc1 Lp1even")
    stamp(a, 3)
    o = ool
    o("Lp1evt:")
    o("s_cmp_eq_u32 s%d, 2" % sCnt)
    o("s_cbranch_scc0 Lp1e6")
    o("s_mov_b32 s%d, 6" % sEvt)
    o("s_cmp_lg_u32 s%d, 0" % sW)
    o("s_cbranch_scc1 Lp1ret")
    o("v_mov_b32 v8, 1")
    o("s_mov_b64 exec, 1")
    o("buffer_atomic_add v8, off, %s, 0 sc1" % R(rO))
    o("s_mov_b64 exec, -1")
    o("s_branch Lp1ret")
    o("Lp1e6:")
    o("s_cmp_eq_u32 s%d, 6" % sCnt)
    o("s_cbranch_scc0 Lp1e7")
    o("s_mov_b32 s%d, 7" % sEvt)
    o("s_cmp_lt_u32 s%d, 3" % sW)
    o("s_cselect_b32 s%d, s%d, s%d" % (rW, sWG, sWU))
    o("s_cselect_b32 s%d, s%d, s%d" % (rW + 1, sWG + 1, sWU + 1))
    o("s_cmp_lt_u32 s%d, 27" % sH)
    o("s_cselect_b32 s%d, 0x%x, 0" % (T2, 640 * 3456))
    o("s_lshl_b32 s%d, s%d, 7" % (T1, sH))
    o("s_lshl_b32 s%d, s%d, 1" % (T0, sH))
    o("s_add_u32 s%d, s%d, s%d" % (T0, T0, sW))
    o("s_lshl_b32 s%d, s%d, 7" % (T0, T0))
    o("s_cmp_lt_u32 s%d, 2" % sW)
    o("s_cselect_b32 s%d, s%d, s%d" % (rW, sWQ, rW))
    o("s_cselect_b32 s%d, s%d, s%d" % (rW + 1, sWQ + 1, rW + 1))
    o("s_cselect_b32 s%d, 0x%x, s%d" % (rW + 2, 640 * 8192, T2))
    o("s_cselect_b32 s%d, s%d, s%d" % (sWo, T0, T1))
    o("s_mov_b32 s%d, 8192" % T3)
    o("s_cselect_b32 s%d, s%d, 3456" % (T3, T3))
    o("s_lshl_b32 s%d, s%d, 3" % (sSt8, T3))
    w_lane_parts(o, vWD, None, "s%d" % T3, 10, 11)
    o("s_branch Lp1ret")
    o("Lp1e7:")
    pollH = "buffer_load_dword v12, off, %s, 0 sc1" % R(rO)
    o(pollH)
    o("s_branch Lp1ret")
    sXo = [72, 73, 74, 75]
    sKs, sVs, sTd = 76, 77, 78
    PK = lambda k: A(k)
    FX = lambda st, qb: A(128 + 16 * st + 4 * qb)
    FW2 = lambda n: A(192 + 4 * (n & 7))
    spin(a, ool, pollH, [12], "0x100", "h1")
    a("s_lshl_b32 s%d, s%d, 3" % (T0, sI))
    a("s_add_u32 s%d, s%d, s%d" % (T1, T0, sW))
    a("s_mul_i32 s%d, s%d, 20480" % (sXo[0], T1))
    a("s_add_u32 s%d, s%d, %d" % (sXo[1], sXo[0], 4 * 20480))
    a("s_sub_u32 s%d, s%d, s%d" % (T1, sW, T0))
    a("s_add_u32 s%d, s%d, 120" % (T1, T1))
    a("s_mul_i32 s%d, s%d, 20480" % (sXo[2], T1))
    a("s_add_u32 s%d, s%d, %d" % (sXo[3], sXo[2], 4 * 20480))
    def ldX(st, imm):
        return ["buffer_load_dwordx4 %s, v%d, %s, s%d offen offset:%d%s" % (reg(FX(st, qb), 4), vL16, R(rX), sXo[qb], imm, SC) for qb in range(4)]
    for x in ldX(0, 0): a(x)
    a("s_lshl_b32 s%d, s%d, 20" % (T0, sH))
    srd(a, rO, sWS, KV_OFF, 1 << 20, T0)
    a("s_lshr_b32 s%d, s%d, 1" % (T0, sW))
    a("s_lshl_b32 s%d, s%d, 1" % (T1, sI))
    a("s_add_u32 s%d, s%d, s%d" % (T0, T0, T1))
    a("s_lshl_b32 s%d, s%d, 16" % (T0, T0))
    a("s_and_b32 s%d, s%d, 1" % (T1, sW))
    a("s_mul_i32 s%d, s%d, %d" % (T2, T1, SUB))
    a("s_add_u32 s%d, s%d, %d" % (T2, T2, WSTEP))
    a("v_subrev_u32 v%d, s%d, v%d" % (vRW, T2, vRW))
    a("s_lshl_b32 s%d, s%d, 11" % (T1, T1))
    a("s_add_u32 s%d, s%d, s%d" % (sKs, T0, T1))
    a("s_add_u32 s%d, s%d, s%d" % (sVs, sKs, T1))
    a("s_add_u32 s%d, s%d, 16384" % (sVs, sVs))
    a("v_add_u32 v%d, 4096, v%d" % (vA0, vL16))
    vL16b = vA0
    def kv_store(src, f):
        if f < 4: return "buffer_store_dwordx4 %s, v%d, %s, s%d offen offset:%d%s" % (reg(src, 4), vL16b if f >> 1 else vL16, R(rO), sKs, (f & 1) * 1024, SC)
        return "buffer_store_dwordx4 %s, v%d, %s, s%d offen offset:%d%s" % (reg(src, 4), vL16, R(rO), sVs, (f - 4) * 1024, SC)
    def rd2(n, slot): return tr_reads(FW2(n), vRW, slot * WSTEP + ((n & 15) >> 2) * SUB, n & 3)
    b = L()
    for grp in (1, 2, 3, 0):
        for f in range(8):
            if f < 4: b0 = (2 * grp + (f >> 1)) * 8 + 2 * (f & 1); b1 = b0 + 1
            else: b0 = 2 * grp * 8 + f; b1 = b0 + 8
            d = pack_pair(b, accreg(b0), accreg(b1), 8)
            if grp == 0: b(kv_store(d, f))
            else:
                for r in range(4): b("v_accvgpr_write_b32 %s, v%d" % (reg(PK(32 * (grp - 1) + 4 * f + r)), d + r))
    weave(a, b, [[x] for x in ldX(1, 1024) + ldX(2, 2048)] + [rd2(n, 0) for n in range(6)], 0.05, 0.75)
    for qb in range(4): a("s_add_u32 s%d, s%d, 3072" % (sXo[qb], sXo[qb]))
    a("s_add_u32 s%d, s%d, 8192" % (sKs, sKs))
    a("s_add_u32 s%d, s%d, 8192" % (sVs, sVs))
    a("s_mov_b32 s%d, 24576" % sTd)
    a("s_mov_b32 s%d, 0" % sCnt)
    a("s_waitcnt vmcnt(16) lgkmcnt(8)")
    stamp(a, 4)
    acc2 = lambda j, qb: accreg(((j + 15) & 15) * 4 + qb)
    def step2(u, first=False):
        mf = []
        for j in range(16):
            for qb in (range(4) if j % 2 == 0 else range(3, -1, -1)):
                d = acc2(j, qb)
                mf.append(mfma(d, FW2(j), FX(u, qb), None if first else d))
        gaps = [[] for _ in range(64)]
        for n in range(16):
            gaps[4 * n + 1] += rd2(n + 6, u if n + 6 < 16 else (u + 1) & 3)
        for m in range(1, 9): gaps[8 * m - 1].append("s_waitcnt lgkmcnt(8)")
        for k, ld in enumerate(ldX((u + 3) & 3, u * 1024)): gaps[2 + 4 * k].append(ld)
        mv = []
        for k in range(2):
            f = 2 * u + k
            gaps[18 + 8 * k].append(kv_store(PK(4 * f), f))
            for lvl in range(2):
                mv += ["v_accvgpr_mov_b32 %s, %s" % (reg(PK(32 * lvl + 4 * f + r)), reg(PK(32 * lvl + 32 + 4 * f + r))) for r in range(4)]
        for k, g in enumerate((22, 23, 24, 27, 30, 31, 32, 34)): gaps[g] += mv[2 * k:2 * k + 2]
        gaps[40] += ["s_waitcnt vmcnt(16)", "s_barrier"]
        if not first:
            lst, tail = dmaW((u + 3) & 3)
            for k, (pre, ld) in enumerate(lst):
                gaps[42 + 4 * k] += pre; gaps[44 + 4 * k].append(ld)
            gaps[58] += tail
        if u == 0:
            gaps[59] += ["s_cmp_lt_u32 s%d, 4" % sCnt, "s_cselect_b32 s%d, 0x%x, 0" % (rX + 2, XN_SZ)]
        if u == 1:
            gaps[59] += ["s_cmp_ge_u32 s%d, 3" % sCnt, "s_cbranch_scc1 Lp2evt", "Lp2ret:"]
        if u == 3:
            gaps[35] += ["s_add_u32 s%d, s%d, 4096" % (sXo[qb], sXo[qb]) for qb in range(3)]
            gaps[36] += ["s_add_u32 s%d, s%d, 4096" % (sXo[3], sXo[3]), "s_add_u32 s%d, s%d, s%d" % (sKs, sKs, sTd), "s_add_u32 s%d, s%d, s%d" % (sVs, sVs, sTd)]
            gaps[38] += ["s_xor_b32 s%d, s%d, %d" % (sTd, sTd, 24576 ^ 8192), "s_cmp_lt_u32 s%d, 2" % sCnt, "s_cselect_b32 s%d, 0x%x, 0" % (rO + 2, 1 << 20)]
            gaps[59] += ["s_add_u32 s%d, s%d, 1" % (sCnt, sCnt), "s_cmp_lt_u32 s%d, 5" % sCnt]
        stream(a, mf, gaps)
    step2(0, True)
    a("s_branch Lp2s1")
    a(".p2align 6")
    a.label("Lp2s0")
    step2(0)
    a.label("Lp2s1")
    step2(1); step2(2); step2(3)
    a("s_cbranch_scc1 Lp2s0")
    stamp(a, 5)
    o("Lp2evt:")
    o("s_cmp_eq_u32 s%d, 3" % sCnt)
    o("s_cbranch_scc0 Lp2e4")
    publish(o, sFK, 0, "pk")
    o("s_branch Lp2ret")
    o("Lp2e4:")
    o("v_and_b32 v13, 7, v0")
    o("v_lshlrev_b32 v13, 2, v13")
    o("s_lshl_b32 s%d, s%d, 5" % (T2, sH))
    pollK = "buffer_load_dword v12, v13, %s, s%d offen sc1" % (R(RF), T2)
    o(pollK)
    o("s_branch Lp2ret")
    rKV, rHB, rCX = R0, R1, R2
    sAh, sAc = [56, 57], [58, 59]
    sKo, sKm, sSlot, sRedo, sBad = 60, 61, 62, 96, 97
    sM = 64
    vRD, vNI = 2, 4
    a("s_waitcnt vmcnt(0) lgkmcnt(0)")
    a("s_barrier")
    spin(a, ool, pollK, [12], "1", "kv")
    a("s_lshl_b32 s%d, s%d, 20" % (T0, sH))
    a("s_sub_u32 s%d, 16, s%d" % (T1, sI))
    a("s_lshl_b32 s%d, s%d, 16" % (T1, T1))
    srd(a, rKV, sWS, KV_OFF, "s%d" % T1, T0)
    srd(a, rHB, sWS, HB_OFF, HB_SZ)
    srd(a, rCX, sWS, CX_OFF, CX_SZ)
    a("s_lshl_b32 s%d, s%d, 10" % (T0, sW))
    a("s_lshl_b32 s%d, s%d, 14" % (T1, sH))
    a("s_add_u32 s%d, s%d, s%d" % (T2, T0, T1))
    a("s_add_u32 s%d, s%d, s%d" % (T3, T2, T1))
    a("s_sub_u32 s%d, 15, s%d" % (T0, sI))
    for k, blk in enumerate((sI, T0)):
        a("s_mul_i32 s%d, s%d, %d" % (sAh[k], blk, HB_RT))
        a("s_add_u32 s%d, s%d, s%d" % (sAh[k], sAh[k], T2))
        a("s_lshl_b32 s%d, s%d, 20" % (sAc[k], blk))
        a("s_add_u32 s%d, s%d, s%d" % (sAc[k], sAc[k], T3))
    def kv_ld(imm): return "buffer_load_dwordx4 v%d, %s, s%d offen offset:%d%s lds" % (vL16, R(rKV), sKo, imm, SC)
    def kv_first():
        g = [["s_lshl_b32 s%d, s%d, 12" % (sKo, sW), "s_add_u32 m0, s%d, 16384" % sKo, "s_lshl_b32 s%d, s%d, 13" % (sKm, sW), kv_ld(0)]]
        g += [[kv_ld(q * 1024)] for q in range(1, 4)]
        g[-1].append("s_add_u32 s%d, s%d, 16384" % (sKo, sKm))
        for st in range(3):
            for hf in range(2):
                g.append(["s_add_u32 m0, s%d, %d" % (sKm, (st + 1) * 32768 + hf * 4096), "s_nop 0", kv_ld(0)])
                g += [[kv_ld(q * 1024)] for q in range(1, 4)]
                g[-1].append("s_add_u32 s%d, s%d, %d" % (sKo, sKo, 4096 if hf == 0 else 32768 - 4096))
        g[-1].append("s_mov_b32 m0, s%d" % sKm)
        return g
    kvg = kv_first()
    a("s_cmp_gt_u32 s%d, 26" % sH)
    a("s_cbranch_scc1 Lnogu")
    c0 = -2.0 * math.sqrt(2.0 / math.pi) * math.log2(math.e)
    a("s_mov_b32 s%d, %s" % (T2, fh(c0 * 0.044715)))
    a("s_mov_b32 s%d, %s" % (T3, fh(c0)))
    b = L()
    for qb in range(4):
        for s2 in range(2):
            blks = [(acc2(8 + 2 * s2 + k, qb), acc2(12 + 2 * s2 + k, qb), 6 + 4 * k) for k in range(2)]
            prs = [(g + r, u + r, t + r) for g, u, t in blks for r in (0, 2)]
            for g, u, t in prs: b("v_pk_mul_f32 %s, %s, %s" % (vr(t, 2), vr(g, 2), vr(g, 2)))
            for g, u, t in prs: b("v_pk_fma_f32 %s, %s, s[%d:%d], s[%d:%d] op_sel:[0,0,1] op_sel_hi:[1,0,1]" % (vr(t, 2), vr(t, 2), T2, T3, T2, T3))
            for g, u, t in prs: b("v_pk_mul_f32 %s, %s, %s" % (vr(t, 2), vr(t, 2), vr(g, 2)))
            for g, u, t in prs:
                b("v_exp_f32 v%d, v%d" % (t, t)); b("v_exp_f32 v%d, v%d" % (t + 1, t + 1))
            for g, u, t in prs: b("v_pk_mul_f32 %s, %s, %s" % (vr(g, 2), vr(g, 2), vr(u, 2)))
            for g, u, t in prs: b("v_pk_add_f32 %s, %s, 1.0 op_sel_hi:[1,0]" % (vr(t, 2), vr(t, 2)))
            for g, u, t in prs:
                b("v_rcp_f32 v%d, v%d" % (t, t)); b("v_rcp_f32 v%d, v%d" % (t + 1, t + 1))
            b("s_add_u32 s%d, s%d, %d" % (T0, sAh[qb >> 1], (qb & 1) * 4096 + s2 * 8192))
            for g, u, t in prs: b("v_pk_mul_f32 %s, %s, %s" % (vr(g, 2), vr(g, 2), vr(t, 2)))
            d = pack_pair(b, blks[0][0], blks[1][0], None)
            b("buffer_store_dwordx4 %s, v%d, %s, s%d offen%s" % (vr(d, 4), vL16, R(rHB), T0, SC))
    weave(a, b, kvg[:12], 0.0, 0.6)
    a.label("Lgud")
    o("Lnogu:")
    for g in kvg[:12]:
        for x in g: o(x)
    o("s_branch Lgud")
    QF = lambda qb, s: A(16 * qb + 4 * s)
    a("s_mov_b32 s%d, %s" % (T2, fh(128 ** -0.5 * math.log2(math.e))))
    b = L()
    for qb in range(4):
        for s in range(4):
            src = []
            for k in range(2):
                r0 = acc2(2 * s + k, qb)
                if r0 >= 256:
                    for r in range(4): b("v_accvgpr_read_b32 v%d, %s" % (8 + r, reg(r0 + r)))
                    r0 = 8
                for r in (0, 2): b("v_pk_mul_f32 %s, %s, s[%d:%d] op_sel_hi:[1,0]" % (vr(r0 + r, 2), vr(r0 + r, 2), T2, T3))
                src.append(r0)
            d = pack_pair(b, src[0], src[1], None)
            for r in range(4): b("v_accvgpr_write_b32 %s, v%d" % (reg(QF(qb, s) + r), d + r))
    CI = lambda qb: 16 + 4 * qb
    ZA, ZB = 32, 40
    SB = lambda buf, qb, kb: 48 + 32 * buf + 8 * qb + 4 * kb
    OA = lambda qb, db: 112 + 32 * qb + 4 * db
    KF = lambda n: A(64 + 4 * n)
    VF = lambda n: A(96 + 4 * n)
    LA_ = lambda qb: A(128 + 4 * qb)
    ONES = A(144)
    b("v_and_b32 v8, 15, v0")
    b("v_lshrrev_b32 v9, 4, v0")
    b("v_lshlrev_b32 v9, 2, v9")
    b("v_sub_u32 v8, v8, v9")
    b("s_lshl_b32 s%d, s%d, 4" % (T0, sW))
    b("v_add_u32 v8, s%d, v8" % T0)
    for kb in range(4):
        for r in range(4):
            m = sM + 2 * (4 * kb + r)
            b("v_cmp_le_i32 s[%d:%d], %d, v8" % (m, m + 1, 16 * kb + r))
    b("v_mov_b32 v%d, 0xff800000" % vNI)
    b("v_and_b32 v9, 3, v0")
    b("v_cmp_eq_u32 vcc, 0, v9")
    b("v_mov_b32 v9, 0x3f803f80")
    for k in range(0, 16, 2): b("v_mov_b64 %s, 0" % vr(CI(0) + k, 2))
    b("v_cndmask_b32 v9, 0, v9, vcc")
    b("s_mov_b32 s%d, 0" % sRedo)
    for k in range(4): b("v_accvgpr_write_b32 %s, v9" % reg(ONES + k))
    weave(a, b, kvg[12:], 0.0, 0.95)
    stamp(a, 6)
    a.label("Lp3")
    def zset(z, qb, half, masked=True):
        out = []
        for k in range(8):
            m = sM + 2 * (8 * half + k)
            if masked: out.append("v_cndmask_b32 v%d, v%d, v%d, s[%d:%d]" % (z + k, vNI, CI(qb), m, m + 1))
            else: out.append("v_mov_b32 v%d, v%d" % (z + k, CI(qb)))
        return out
    def rdK(half): return ["ds_read_b128 %s, v%d offset:%d" % (reg(KF(n), 4), vRD, 16384 + (8 * half + n) * 1024) for n in range(8)]
    def rdV(half): return ["ds_read_b128 %s, v%d offset:%d" % (reg(VF(n), 4), vRD, (8 * half + n) * 1024) for n in range(8)]
    a("v_mov_b32 v%d, v%d" % (vRD, vL16))
    a("s_waitcnt vmcnt(24)")
    a("s_barrier")
    for x in rdK(0): a(x)
    a("s_mov_b32 s%d, 0" % sSlot)
    a("s_mov_b32 s%d, 0" % sBad)
    for x in zset(ZA, 0, 0, False): a(x)
    a("s_cmp_lg_u32 s%d, 0" % sI)
    a("s_cbranch_scc1 Lz0")
    for x in zset(ZA, 0, 0): a(x)
    a.label("Lz0")
    for x in zset(ZB, 0, 1): a(x)
    for k in range(16): a("v_accvgpr_write_b32 %s, 0" % reg(LA_(0) + k))
    for k in range(0, 64, 2): a("v_mov_b64 %s, 0" % vr(OA(0, 0) + k, 2))
    def qk(qs, buf, z):
        mf = []
        for kb in range(2):
            for s in range(4):
                for qb in qs:
                    d = SB(buf, qb, kb)
                    c = d if s else (z + 4 * kb if (z is not None and qb == qs[0]) else CI(qb))
                    mf.append(mfma(d, KF(4 * kb + s), QF(qb, s), c))
        return mf
    def pv(qs, buf):
        mf = []
        for db in range(8):
            for qb in (qs if db % 2 == 0 else qs[::-1]):
                mf.append(mfma(OA(qb, db), VF(db), SB(buf, qb, 0), OA(qb, db)))
        for qb in qs: mf.append(mfma(LA_(qb), ONES, SB(buf, qb, 0), LA_(qb)))
        return mf
    def units(qs, buf, kb):
        g = []
        for qb in qs:
            s, p = SB(buf, qb, kb), SB(buf, qb, 0) + 2 * kb
            g += [["v_exp_f32 v%d, v%d" % (s + r, s + r)] for r in range(4)]
            g.append(["v_cvt_pk_bf16_f32 v%d, v%d, v%d" % (p, s, s + 1), "v_cvt_pk_bf16_f32 v%d, v%d, v%d" % (p + 1, s + 2, s + 3)])
        return g
    SHIFT = {4: 0, 3: 0, 2: 3, 1: 4, 0: 0}
    LG = "s_waitcnt lgkmcnt(0)"
    def part(mf, un, rd, dm, extra=(), head=(), tail=(), last=(), quiet=False, late=()):
        n = len(mf)
        ex = [list(extra[k:k + 2]) for k in range(0, len(extra), 2)]
        lt = [list(late)] if late else []
        room = n - 1 - len(un) - len(dm) - len(ex) - len(lt)
        npair = min(max(len(rd) - room, 0), len(rd) // 2)
        rg = [rd[2 * k:2 * k + 2] for k in range(npair)] + [[x] for x in rd[2 * npair:]]
        if n == 0:
            for g in rg + un:
                for x in g: a(x)
                a("s_nop 0")
            for x in list(head) + list(tail) + list(last): a(x)
            return
        mem = [(0.70 * k / len(rg), g) for k, g in enumerate(rg)]
        val = [(0.02 + 0.90 * k / len(un), g) for k, g in enumerate(un)]
        val += [(0.05 + 0.85 * k / len(ex), g) for k, g in enumerate(ex)]
        val += [(0.80, g) for g in lt]
        if quiet:
            mem += [(0.70 * (k + 0.6) / len(dm), [ld]) for k, (pre, ld) in enumerate(dm)]
            gaps = spread(len(mem), mem)
            rest = spread(n - 1 if len(val) <= n - 1 - len(mem) else n, val, len(mem))
            gaps = gaps + rest[len(mem):]
            gaps += [[] for _ in range(n - len(gaps))]
        else:
            mem += [(0.30 + 0.60 * k / len(dm), [ld]) for k, (pre, ld) in enumerate(dm)]
            groups = mem + val
            gaps = spread(n - 1, groups) + [[]] if len(groups) <= n - 1 else spread(n, groups)
        lo = 0
        for x in head: lo = ride(gaps, x, lo, n - 1, False)
        prev = -1
        for pre, ld in dm:
            g = [k for k in range(prev + 1, n) if ld in gaps[k]][0]
            hi = g - 1
            for x in reversed(pre): hi = max(ride(gaps, x, prev + 1, hi, True) - 1, prev + 1)
            prev = g
        lo = max(prev + 1, n - 3 - 2 * len(tail))
        for x in tail: lo = ride(gaps, x, min(lo, n - 2), n - 2, False)
        if gaps[n - 1] and gaps[n - 1][-1].startswith("v_cvt") and len(last) < 2: gaps[n - 1].append("s_nop 0")
        gaps[n - 1] += list(last)
        stream(a, mf, gaps)
    adv_s = ["s_add_u32 s%d, s%d, 0x8000" % (sSlot, sSlot), "s_and_b32 s%d, s%d, 0x18000" % (sSlot, sSlot)]
    adv_v = ["v_or_b32 v%d, s%d, v%d" % (vRD, sSlot, vL16)]
    def trip(cur, nxt, zb, xa=(), xb=(), xc=(), dma=True, vm_next=16, loop=None, mid=()):
        d = []
        if dma:
            for k in range(8):
                pre = ["s_add_u32 s%d, s%d, 4096" % (sKo, sKo), "s_add_u32 m0, s%d, 4096" % sKm] if k == 4 else []
                d.append((pre, kv_ld((k & 3) * 1024)))
        cut = [0, 2, 4, 6, 8] if len(cur) > 2 else [0, 4, 7, 8, 8]
        if not dma: cut = [0] * 5
        dtail = ["s_add_u32 s%d, s%d, %d" % (sKo, sKo, 32768 - 4096), "s_add_u32 s%d, s%d, 0x8000" % (sKm, sKm),
                 "s_and_b32 s%d, s%d, 0x1ffff" % (sKm, sKm), "s_mov_b32 m0, s%d" % sKm] if dma else []
        l2, t2 = [LG], []
        if loop:
            t2 = ["s_sub_u32 s%d, s%d, 1" % (sCnt, sCnt), "s_cmp_eq_u32 s%d, 0" % sCnt]
            l2 = [LG, "s_cbranch_scc1 %s_m" % loop, "%s_r:" % loop]
        part(qk(cur, 1, ZB if zb else None), units(cur, 0, 1)[SHIFT[len(cur)]:], rdV(0), d[cut[0]:cut[1]], last=[LG], quiet=True)
        part(pv(cur, 0), units(cur, 1, 0), rdK(0) if nxt else [], d[cut[1]:cut[2]], extra=xa, tail=t2, last=l2)
        part(qk(nxt, 0, ZA) if nxt else [], units(cur, 1, 1), rdV(1), d[cut[2]:cut[3]], extra=xb, head=adv_s if nxt else [], last=[LG] if nxt else [LG] + list(mid))
        if nxt:
            last = ["s_waitcnt vmcnt(%d) lgkmcnt(0)" % vm_next, "s_barrier"]
            tl = list(dtail)
            if loop:
                tl.append("s_cmp_lg_u32 s%d, 0" % sCnt)
                last.append("s_cbranch_scc1 %s" % loop)
            part(pv(cur, 1), units(nxt, 0, 0) + units(nxt, 0, 1)[:SHIFT[len(nxt)]], rdK(1), d[cut[3]:cut[4]], extra=xc, late=adv_v, tail=tl, last=last)
    BSZ, STG = 4 * 5152, 4 * 5152 + 16384
    vBo = [240, 241, 242, 243, 244]
    vRA, vRB0, vRB1, vXo = 245, 246, 247, 248
    sKQ, sRT, sCT = 6, 7, 8
    sA4, sB4, sSl, sSd = 9, 10, 11, 12
    sAmD = [18, 19, 20, 21]
    x4 = L()
    x4("v_lshrrev_b32 v250, 4, v0")
    x4("v_bfe_u32 v251, v0, 2, 2")
    x4("v_and_b32 v252, 3, v0")
    x4("v_mul_u32_u24 v249, 1280, v251")
    x4("v_lshl_add_u32 v249, v252, 4, v249")
    for e in range(5):
        x4("v_add_u32 v253, %d, v250" % (4 * e))
        x4("v_mul_u32_u24 v254, 52, v253")
        x4("v_lshrrev_b32 v254, 8, v254")
        x4("v_mul_u32_u24 v255, 5, v254")
        x4("v_sub_u32 v253, v253, v255")
        x4("v_lshl_add_u32 v%d, v253, 6, v249" % vBo[e])
        x4("v_and_b32 v255, 1, v254")
        x4("v_lshrrev_b32 v254, 1, v254")
        x4("v_lshl_add_u32 v254, v255, 1, v254")
        x4("v_mul_u32_u24 v254, %d, v254" % (8 * 1280))
        x4("v_add_u32 v%d, v%d, v254" % (vBo[e], vBo[e]))
    x4("v_lshlrev_b32 v%d, 3, v252" % vRB0)
    x4("v_lshl_add_u32 v%d, v251, 6, v%d" % (vRB0, vRB0))
    x4("v_and_b32 v253, 1, v250")
    x4("v_mul_u32_u24 v253, 5152, v253")
    x4("v_lshrrev_b32 v254, 1, v250")
    x4("v_mul_u32_u24 v254, 2560, v254")
    x4("v_add3_u32 v%d, v%d, v253, v254" % (vRB0, vRB0))
    x4("v_and_b32 v253, 15, v0")
    x4("v_mul_u32_u24 v253, 1280, v253")
    x4("v_lshl_add_u32 v%d, v250, 3, v253" % vXo)
    a(LG)
    zi = ["v_mov_b32 v%d, 0" % (OA(2, 0) + k) for k in range(64)]
    stream(a, qk([0, 1, 2, 3], 0, ZA), [zi[2 * k:2 * k + 2] for k in range(32)])
    for x in rdK(1): a(x)
    for x in adv_s: a(x)
    for g in units([0, 1, 2, 3], 0, 0):
        if len(g) == 2: a("s_nop 0")
        for x in g: a(x)
    for x in adv_v: a(x)
    a("s_lshl_b32 s%d, s%d, 1" % (sCnt, sI))
    a("v_mov_b32 v8, 1")
    a("s_waitcnt vmcnt(16) lgkmcnt(0)")
    a("s_barrier")
    a("s_cmp_lg_u32 s%d, 0" % sW)
    a("s_cbranch_scc1 Lph_np")
    a("s_mov_b64 exec, 1")
    a("buffer_store_dword v8, off, %s, s%d offset:1024 sc1" % (R(RF), sFW))
    a("s_mov_b64 exec, -1")
    a("Lph_np:")
    stamp(a, 7)
    a("s_cmp_eq_u32 s%d, 0" % sI)
    a("s_cbranch_scc1 Lt43")
    a(".p2align 6")
    a.label("Lt44")
    trip([0, 1, 2, 3], [0, 1, 2, 3], False, loop="Lt44")
    a.label("Lt43")
    trip([0, 1, 2, 3], [1, 2, 3], True, xa=zset(ZA, 1, 0) + x4[:8], xc=zset(ZB, 1, 1) + x4[8:26])
    for x in zset(ZA, 2, 0, False): a(x)
    a("s_cmp_lg_u32 s%d, 7" % sI)
    a("s_cbranch_scc1 Lt32")
    for x in zset(ZA, 2, 0): a(x)
    a.label("Lt32")
    trip([1, 2, 3], [2, 3], True, xa=x4[26:36], xc=zset(ZB, 2, 1) + x4[36:40])
    stamp(a, 8)
    def finish(qs, groups=(), lo=0.0, hi=1.0, pre=()):
        b = L()
        b.extend(pre)
        for k, qb in enumerate(qs): b("v_accvgpr_read_b32 v%d, %s" % (8 + 2 * k, reg(LA_(qb))))
        b("s_mov_b32 s%d, %s" % (T0, fh(2.0 ** 40)))
        b("v_min_f32 v6, v8, v10")
        b("v_add_f32 v7, v8, v10")
        b("v_cmp_nle_f32 vcc, %s, v6" % fh(2.0 ** -30))
        b("v_cmp_nge_f32 s[%d:%d], s%d, v7" % (T2, T3, T0))
        b("v_rcp_f32 v8, v8")
        b("v_rcp_f32 v10, v10")
        for x in b: a(x)
        a("s_or_b64 vcc, vcc, s[%d:%d]" % (T2, T3))
        a("s_cselect_b32 s%d, 1, s%d" % (sBad, sBad))
        b = L()
        for k, qb in enumerate(qs):
            for s in range(4):
                for r in range(0, 8, 2):
                    r0 = OA(qb, 2 * s) + r
                    b("v_pk_mul_f32 %s, %s, %s op_sel_hi:[1,0]" % (vr(r0, 2), vr(r0, 2), vr(8 + 2 * k, 2)))
                b("s_add_u32 s%d, s%d, %d" % (T0, sAc[qb >> 1], (qb & 1) * 4096 + s * 8192))
                d = pack_pair(b, OA(qb, 2 * s), OA(qb, 2 * s + 1), None)
                b("buffer_store_dwordx4 %s, v%d, %s, s%d offen%s" % (vr(d, 4), vL16, R(rCX), T0, SC))
        weave(a, b, list(groups), lo, hi)
    a("s_bfe_u32 s%d, s2, 0x20001" % sKQ)
    a("s_and_b32 s%d, s2, 1" % T0)
    a("s_lshl_b32 s%d, s%d, 3" % (T0, T0))
    a("s_add_u32 s%d, s%d, s%d" % (sRT, T0, sI))
    a("s_bfe_u32 s%d, s2, 0x20003" % sCT)
    srd(a, R3, sX, size=XN_SZ)
    a("s_lshr_b32 s%d, s%d, 1" % (T0, sW))
    a("s_lshl_b32 s%d, s%d, 1" % (T1, sRT))
    a("s_add_u32 s%d, s%d, s%d" % (T1, T1, T0))
    a("s_lshl_b32 s%d, s%d, 2" % (T1, T1))
    a("s_add_u32 s%d, s%d, s%d" % (T1, T1, sKQ))
    a("s_mul_i32 s%d, s%d, %d" % (T1, T1, 16 * 1280))
    a("s_lshl_b32 s%d, s%d, 12" % (T0, T0))
    a("s_add_u32 s%d, s%d, %d" % (T0, T0, BSZ))
    for x in x4[40:]: a(x)
    a("v_add_u32 v%d, s%d, v%d" % (vRA, T0, vL16))
    a("s_and_b32 s%d, s%d, 1" % (T0, sW))
    a("s_lshl_b32 s%d, s%d, 1" % (T2, sCT))
    a("s_add_u32 s%d, s%d, s%d" % (T2, T2, T0))
    a("s_mul_i32 s%d, s%d, 160" % (T2, T2))
    a("s_add_u32 s13, s%d, s%d" % (T1, T2))
    a("s_mul_i32 s%d, s%d, 736" % (T1, T0))
    a("v_add_u32 v%d, s%d, v%d" % (vRB1, T1, vRB0))
    a("s_mul_i32 s%d, s%d, 544" % (T1, T0))
    a("v_add_u32 v%d, s%d, v%d" % (vRB0, T1, vRB0))
    xl = [["buffer_load_dwordx2 %s, v%d, %s, s13 offen offset:%d" % (vr(80 + 2 * nb, 2), vXo, R(R3), nb * 32)] for nb in range(5)]
    finish([0, 1], xl)
    a("s_lshl_b32 s%d, s%d, 2" % (sCnt, sI))
    a("s_sub_u32 s%d, 28, s%d" % (sCnt, sCnt))
    a("s_cmp_eq_u32 s%d, 0" % sCnt)
    a("s_cbranch_scc1 Lt21")
    a(".p2align 6")
    a.label("Lt22")
    trip([2, 3], [2, 3], False, loop="Lt22")
    a.label("Lt21")
    stamp(a, 9)
    pollF = "buffer_load_dwordx4 v[48:51], v%d, %s, 0 offen offset:1024 sc1" % (vL16, R(RF))
    a(pollF)
    trip([2, 3], [3], True, xa=zset(ZA, 3, 0), xc=zset(ZB, 3, 1), dma=False, vm_next=0)
    trip([3], [], True, dma=False, mid=["s_barrier"])
    rA4, rB4 = R1, R3
    b = L()
    b("s_mul_i32 s%d, s%d, %d" % (T0, sRT, HB_RT))
    srd(b, rA4, sWS, HB_OFF, HB_RT, T0)
    srd(b, rB4, sWD, size=1728 * 1280)
    def k_start(o_, per):
        o_("s_mul_i32 s%d, s%d, %d" % (T0, sKQ, 2 * per))
        o_("s_add_u32 s%d, s%d, s%d" % (T0, T0, sW))
        o_("s_lshl_b32 s%d, s%d, 12" % (sA4, T0))
        o_("s_lshr_b32 s%d, s%d, 1" % (T1, T0))
        o_("s_lshl_b32 s%d, s%d, 3" % (T1, T1))
        o_("s_and_b32 s%d, s%d, 1" % (T0, sW))
        o_("s_add_u32 s%d, s%d, s%d" % (T1, T1, T0))
        o_("s_mul_i32 s%d, s%d, 5120" % (T1, T1))
        o_("s_mul_i32 s%d, s%d, 320" % (T0, sCT))
        o_("s_add_u32 s%d, s%d, s%d" % (sB4, T1, T0))
    k_start(b, 14)
    b("s_mul_i32 s%d, s%d, 5152" % (sSl, sW))
    b("s_mul_i32 s%d, s%d, %d" % (T1, sW, 5152 - 4096))
    for e in range(4):
        b("s_xor_b32 s%d, s%d, %d" % (T0, sKQ, e))
        b("s_lshl_b32 s%d, s%d, 10" % (T0, T0))
        b("s_add_u32 s%d, s%d, %d" % (T0, T0, BSZ - e * 1024))
        b("s_sub_u32 s%d, s%d, s%d" % (sAmD[e], T0, T1))
    pvl = pv([3], 1)
    stream(a, pvl, [b[6 * k:6 * k + 6] for k in range(8)] + [b[48:]])
    spin(a, ool, pollF, [48, 49, 50, 51], "1", "fh")
    def dma4():
        out = []
        for e in range(5):
            out.append((["s_add_u32 m0, s%d, %d" % (sSl, e * 1024)], "buffer_load_dwordx4 v%d, %s, s%d offen lds" % (vBo[e], R(rB4), sB4)))
        for e in range(4):
            out.append((["s_add_u32 m0, s%d, s%d" % (sSl, sAmD[e])], "buffer_load_dwordx4 v%d, %s, s%d offen offset:%d%s lds" % (vL16, R(rA4), sA4, e * 1024, SC)))
        return out, ["s_add_u32 s%d, s%d, 16384" % (sA4, sA4), "s_add_u32 s%d, s%d, %d" % (sB4, sB4, 64 * 1280)]
    def stage_groups():
        l, t = dma4()
        return flat_dma(l, t + ["s_add_u32 s%d, s%d, %d" % (sSl, sSl, STG)])
    for g in stage_groups():
        for x in g: a(x)
    stamp(a, 10)
    finish([2, 3])
    ACC = lambda nb, rb: 16 + 20 * rb + 4 * nb
    F4 = lambda st, n: A(148 + 36 * st + 4 * n)
    b = L()
    b("v_mov_b32 v6, s%d" % sBad)
    b("s_lshl_b32 s%d, s%d, 2" % (T2, sW))
    b("s_add_u32 s%d, s%d, %d" % (T2, T2, LFLAG))
    b("v_mov_b32 v7, s%d" % T2)
    b("ds_write_b32 v7, v6")
    b("v_mov_b32 v7, %d" % LFLAG)
    for k in range(10):
        b("v_lshlrev_b32 v%d, 16, v%d" % (16 + 2 * k, 80 + k))
        b("v_and_b32 v%d, 0xffff0000, v%d" % (17 + 2 * k, 80 + k))
    for k in range(36, 96, 2): b("v_mov_b64 %s, 0" % vr(k, 2))
    weave(a, b, stage_groups() + stage_groups())
    def rd4(st, ks):
        g = [["ds_read_b128 %s, v%d offset:%d" % (reg(F4(st, rb), 4), vRA, ks * 8192 + rb * 1024) for rb in (2 * k, 2 * k + 1)] for k in range(2)]
        for nb in range(5):
            off = ks * 10304 + (nb >> 1) * 256 + (nb & 1) * 32
            v = vRB1 if nb & 1 else vRB0
            g.append(["ds_read_b64_tr_b16 %s, v%d offset:%d" % (reg(F4(st, 4 + nb) + 2 * j, 2), v, off + j * 1280) for j in range(2)])
        return [g[2], g[0], g[1], g[3], g[4], g[5], g[6]]
    def mf4(st, rbs=(0, 1, 2, 3), rb_major=False):
        if rb_major: return [mfma(ACC(nb, rb), F4(st, 4 + nb), F4(st, rb), ACC(nb, rb)) for rb in rbs for nb in range(5)]
        return [mfma(ACC(nb, rb), F4(st, 4 + nb), F4(st, rb), ACC(nb, rb)) for nb in range(5) for rb in (rbs if nb % 2 == 0 else rbs[::-1])]
    a("s_mov_b32 s%d, 0" % sCnt)
    a("s_waitcnt vmcnt(26) lgkmcnt(0)")
    a("s_barrier")
    a("ds_read_b128 v[8:11], v7")
    for g in rd4(0, 0):
        for x in g: a(x)
    l4, t4 = dma4()
    a("s_waitcnt lgkmcnt(14)")
    a("v_or3_b32 v8, v8, v9, v10")
    a("v_or_b32 v8, v8, v11")
    a("s_nop 0")
    a("v_readfirstlane_b32 s%d, v8" % T0)
    a("s_nop 1")
    a("s_cmp_gt_u32 s%d, s%d" % (T0, sRedo))
    a("s_cbranch_scc1 Lredo")
    sEv4 = 64
    a("s_mov_b32 s%d, 1" % sEv4)
    for g in flat_dma(l4[:5]):
        for x in g: a(x)
    a(LG)
    stamp(a, 11)
    a("s_branch Lp4a")
    def part4(st, rd, dm, tail, vtail, last):
        gaps = [[] for _ in range(20)]
        for k, g in enumerate(rd): gaps[(0, 3, 6, 8, 10, 12, 14)[k]] += g
        for k, (pre, ld) in enumerate(dm):
            p = (1, 4, 7, 11, 15)[k]
            gaps[p] += pre
            gaps[(2, 5, 9, 13, 16)[k]].append(ld)
        gaps[17] += tail[:3]; gaps[18] += tail[3:] + vtail
        gaps[19] += last
        stream(a, mf4(st), gaps)
    a(".p2align 6")
    a.label("Lp4b")
    a("s_cmp_eq_u32 s%d, s%d" % (sCnt, sEv4))
    a("s_cbranch_scc1 Lp4evt")
    a.label("Lp4ret")
    part4(1, rd4(0, 0), l4[:5], [], [], [LG])
    a.label("Lp4a")
    gaps = [[] for _ in range(20)]
    for k, g in enumerate(rd4(1, 1)): gaps[(0, 3, 6, 8, 10, 12, 13)[k]] += g
    for k, (pre, ld) in enumerate(l4[5:]):
        gaps[(1, 4, 7, 9)[k]] += pre if k < 3 else []
        gaps[(2, 5, 9, 14)[k]].append(ld)
    gaps[11] += l4[8][0] + ["s_and_b32 s%d, s%d, 3" % (T0, sCnt), "s_cselect_b32 s%d, %d, 0x%x" % (T1, 0, (-4 * STG) & 0xFFFFFFFF)]
    gaps[1] += ["s_add_u32 s%d, s%d, 1" % (T2, sCnt), "s_and_b32 s%d, s%d, 3" % (T0, T2)]
    gaps[4] = ["s_cselect_b32 s%d, %d, 0x%x" % (sSd, 0, (-4 * STG) & 0xFFFFFFFF), "s_add_u32 s%d, s%d, %d" % (sSd, sSd, STG)] + gaps[4]
    gaps[15] += t4 + ["s_add_u32 s%d, s%d, s%d" % (sSl, sSl, T1)]
    gaps[16] += ["s_add_u32 s%d, s%d, %d" % (sSl, sSl, STG), "v_add_u32 v%d, s%d, v%d" % (vRA, sSd, vRA), "v_add_u32 v%d, s%d, v%d" % (vRB0, sSd, vRB0)]
    gaps[17] += ["s_mov_b32 s%d, s%d" % (sCnt, T2), "v_add_u32 v%d, s%d, v%d" % (vRB1, sSd, vRB1)]
    gaps[18] += ["s_cmp_lt_u32 s%d, 23" % sCnt]
    gaps[19] += ["s_waitcnt vmcnt(18) lgkmcnt(0)", "s_barrier", "s_cbranch_scc1 Lp4b"]
    stream(a, mf4(0), gaps)
    stamp(a, 12)
    o("Lp4evt:")
    o("s_cmp_eq_u32 s%d, 1" % sCnt)
    o("s_cbranch_scc0 Lp4e4")
    o("s_mov_b32 s%d, 4" % sEv4)
    publish(o, sFW, 2048, "pc")
    o("s_branch Lp4ret")
    o("Lp4e4:")
    o("s_sub_u32 s%d, 15, s%d" % (T0, sRT))
    o("s_min_u32 s%d, s%d, s%d" % (T0, T0, sRT))
    o("s_lshl_b32 s%d, s%d, 2" % (T0, T0))
    o("s_add_u32 s%d, s%d, s%d" % (T0, T0, sKQ))
    o("s_lshl_b32 s%d, s%d, 5" % (T2, T0))
    o("v_and_b32 v13, 7, v0")
    o("v_lshlrev_b32 v13, 2, v13")
    spin(o, None, "buffer_load_dword v12, v13, %s, s%d offen offset:2048 sc1" % (R(RF), T2), [12], "1", "fc", first=False)
    o("s_lshl_b32 s%d, s%d, 20" % (T0, sRT))
    o("s_add_u32 s%d, s%d, 1" % (T1, sKQ))
    o("s_lshl_b32 s%d, s%d, 18" % (T2, T1))
    srd(o, rA4, sWS, CX_OFF, "s%d" % T2, T0)
    o("s_mul_i32 s%d, s%d, %d" % (T2, T1, 1024 * 1280))
    srd(o, rB4, sWO, size="s%d" % T2)
    k_start(o, 32)
    o("s_branch Lp4ret")
    rE, rOut = R0, R2
    b = L()
    srd(b, rE, sWS, EX_OFF, EX_SZ)
    srd(b, rOut, sOUT, size=XN_SZ)
    sEx = [65, 66, 67]
    b("s_lshl_b32 s%d, s%d, 2" % (T0, sRT))
    b("s_add_u32 s%d, s%d, s%d" % (T0, T0, sCT))
    b("s_lshl_b32 s%d, s%d, 2" % (T0, T0))
    b("s_mul_i32 s%d, s%d, 5120" % (T2, sW))
    for d in (1, 2, 3):
        b("s_xor_b32 s%d, s%d, %d" % (T1, sKQ, d))
        b("s_add_u32 s%d, s%d, s%d" % (T1, T1, T0))
        b("s_mul_i32 s%d, s%d, %d" % (T1, T1, 3 * 20480))
        b("s_add_u32 s%d, s%d, s%d" % (T1, T1, T2))
        b("s_add_u32 s%d, s%d, %d" % (sEx[d - 1], T1, (d - 1) * 20480))
    b("s_add_u32 s%d, s%d, s%d" % (T1, T0, sKQ))
    b("s_mul_i32 s%d, s%d, %d" % (T1, T1, 3 * 20480))
    b("s_add_u32 s68, s%d, s%d" % (T1, T2))
    b("s_add_u32 s69, s68, 20480")
    b("s_add_u32 s70, s69, 20480")
    gaps = [b[3 * k:3 * k + 3] for k in range(12)] + [[] for _ in range(8)]
    assert len(b) <= 36
    gaps[12] += ["v_add_u32 v%d, 4096, v%d" % (vRA, vL16)]
    def ex_st(d, nb): return "buffer_store_dwordx4 %s, v%d, %s, s%d offen offset:%d sc1" % (vr(ACC(nb, d), 4), vRA if nb == 4 else vL16, R(rE), sEx[d - 1], (nb & 3) * 1024)
    sts = [ex_st(d, nb) for d in (1, 2, 3) for nb in range(5)]
    for k in range(7): gaps[13 + k].append(sts[k])
    stream(a, mf4(1, (1, 2, 3, 0), True), gaps)
    for x in sts[7:]: a(x)
    a("s_and_b32 s%d, s2, 0xf9" % T0)
    a("v_and_b32 v13, 3, v0")
    a("v_lshlrev_b32 v13, 3, v13")
    a("s_lshl_b32 s%d, s%d, 2" % (T2, T0))
    a("v_and_b32 v5, 15, v0")
    a("v_mul_u32_u24 v5, 176, v5")
    a("v_lshrrev_b32 v6, 4, v0")
    a("v_lshl_add_u32 v5, v6, 3, v5")
    a("s_mul_i32 s%d, s%d, %d" % (T0, sW, 16 * 176))
    a("s_add_u32 s%d, s%d, %d" % (T0, T0, 4 * STG))
    a("v_add_u32 v5, s%d, v5" % T0)
    for n in range(3):
        a("v_add_u32 v6, %d, v0" % (64 * n))
        if n == 2: a("v_min_u32 v6, 159, v6")
        a("v_mul_u32_u24 v7, 6554, v6")
        a("v_lshrrev_b32 v7, 16, v7")
        a("v_mul_u32_u24 v9, 10, v7")
        a("v_sub_u32 v6, v6, v9")
        a("v_lshlrev_b32 v6, 4, v6")
        a("v_mul_u32_u24 v9, 1280, v7")
        a("v_add_u32 v%d, v9, v6" % (160 + n))
        a("v_mul_u32_u24 v9, 176, v7")
        a("v_add3_u32 v%d, v9, v6, s%d" % (164 + n, T0))
    a("s_waitcnt vmcnt(0)")
    a("s_barrier")
    publish(a, sFW, 3072, "px")
    stamp(a, 13)
    spin(a, None, "buffer_load_dword v12, v13, %s, s%d offen offset:3072 sc1" % (R(RF), T2), [12], "1", "fx", first=False)
    stamp(a, 14)
    for d in range(3):
        for nb in range(5):
            a("buffer_load_dwordx4 %s, v%d, %s, s%d offen offset:%d sc1" % (vr(96 + 20 * d + 4 * nb, 4), vRA if nb == 4 else vL16, R(rE), 68 + d, (nb & 3) * 1024))
    for d in range(3):
        a("s_waitcnt vmcnt(%d)" % (10 - 5 * d))
        for k in range(0, 20, 2): a("v_pk_add_f32 %s, %s, %s" % (vr(16 + k, 2), vr(16 + k, 2), vr(96 + 20 * d + k, 2)))
    for nb in range(5):
        a("v_cvt_pk_bf16_f32 v%d, v%d, v%d" % (36 + 2 * nb, 16 + 4 * nb, 17 + 4 * nb))
        a("v_cvt_pk_bf16_f32 v%d, v%d, v%d" % (37 + 2 * nb, 18 + 4 * nb, 19 + 4 * nb))
        a("ds_write_b64 v5, %s offset:%d" % (vr(36 + 2 * nb, 2), nb * 32))
    for n in range(3): a("ds_read_b128 %s, v%d" % (vr(48 + 4 * n, 4), 164 + n))
    for n in range(3):
        a("s_waitcnt lgkmcnt(%d)" % (2 - n))
        if n == 2: a("s_mov_b32 exec_hi, 0")
        a("buffer_store_dwordx4 %s, v%d, %s, s13 offen" % (vr(48 + 4 * n, 4), 160 + n, R(rOut)))
    if STAMP:
        a("s_mov_b64 exec, -1")
        a("s_waitcnt vmcnt(0)")
    stamp(a, 15)
    stamp_out(a)
    a.label("Lend")
    a("s_endpgm")
    a.label("Lredo")
    a("s_mov_b32 s%d, 1" % sRedo)
    a("s_waitcnt vmcnt(0) lgkmcnt(0)")
    a("s_barrier")
    a("v_and_b32 v8, 15, v0")
    a("v_lshrrev_b32 v9, 4, v0")
    a("v_lshlrev_b32 v9, 2, v9")
    a("v_sub_u32 v8, v8, v9")
    a("s_lshl_b32 s%d, s%d, 4" % (T0, sW))
    a("v_add_u32 v8, s%d, v8" % T0)
    a("s_lshl_b32 s%d, s%d, 7" % (T0, sI))
    a("s_sub_u32 s%d, %d, s%d" % (T1, 15 * 128, T0))
    for qb in range(4):
        a("s_add_u32 s%d, s%d, %d" % (T2, T0 if qb < 2 else T1, 64 * (qb & 1)))
        a("v_add_u32 v%d, s%d, v8" % (240 + qb, T2))
        a("v_mov_b32 v%d, v%d" % (244 + qb, vNI))
    a("s_mov_b32 s%d, 0" % sCnt)
    a.label("Lmx")
    a("s_lshr_b32 s%d, s%d, 6" % (T0, sCnt))
    a("s_lshl_b32 s%d, s%d, 15" % (T0, T0))
    a("s_and_b32 s%d, s%d, 63" % (T1, sCnt))
    a("s_lshl_b32 s%d, s%d, 8" % (T1, T1))
    a("s_add_u32 s%d, s%d, s%d" % (T0, T0, T1))
    for s in range(4):
        a("buffer_load_dwordx4 %s, v%d, %s, s%d offen offset:%d%s" % (reg(KF(s), 4), vL16, R(rKV), T0, s * 1024, SC))
    a("s_waitcnt vmcnt(0)")
    for qb in range(4):
        for s in range(4): a(mfma(SB(0, qb, 0), KF(s), QF(qb, s), SB(0, qb, 0) if s else None))
    a("s_nop 7")
    for r in range(4):
        a("s_add_u32 s%d, s%d, %d" % (T0, sCnt, r))
        for qb in range(4):
            a("v_cmp_le_i32 vcc, s%d, v%d" % (T0, 240 + qb))
            a("s_nop 1")
            a("v_cndmask_b32 v9, v%d, v%d, vcc" % (vNI, SB(0, qb, 0) + r))
            a("v_max_f32 v%d, v%d, v9" % (244 + qb, 244 + qb))
    a("s_add_u32 s%d, s%d, 16" % (sCnt, sCnt))
    a("s_lshr_b32 s%d, s%d, 9" % (T0, rKV + 2))
    a("s_cmp_lt_u32 s%d, s%d" % (sCnt, T0))
    a("s_cbranch_scc1 Lmx")
    for qb in range(4):
        for sw in ("16", "32"):
            a("v_mov_b32 v9, v%d" % (244 + qb))
            a("s_nop 1")
            a("v_permlane%s_swap_b32 v%d, v9" % (sw, 244 + qb))
            a("v_max_f32 v%d, v%d, v9" % (244 + qb, 244 + qb))
        for r in range(4): a("v_sub_f32 v%d, 0, v%d" % (CI(qb) + r, 244 + qb))
    for g in kv_first():
        for x in g: a(x)
    a("s_branch Lp3")
    for lp, qb in (("Lt44", 0), ("Lt22", 2)):
        a.label(lp + "_m")
        for x in zset(ZA, qb, 0): a(x)
        a("s_nop 0")
        a("s_branch %s_r" % lp)
    for x in ool: a(x)

def build():
    body = Asm()
    kernel(body)
    ref = open("cdna_kernels/%s.s.ref" % NAME).read().split("\n")
    head = [l for l in ref if l.startswith(";   offset") or l.startswith("; Kernarg")]
    out = "\n".join(head) + "\n"
    out += "; @launch grid=(256,1,1) block=(256,1,1) lds=%d\n" % LDS_TOTAL
    out += '.amdgcn_target "amdgcn-amd-amdhsa--gfx950"\n.text\n'
    out += body.text()
    out += '.section .rodata,"a"\n.p2align 6\n' + kernel_desc(KN, 512, 256)
    return out

if __name__ == "__main__":
    for x in list(sys.argv):
        if x.startswith("-D"):
            kv = x[2:].split("="); OPT[kv[0]] = kv[1] if len(kv) > 1 else "1"; sys.argv.remove(x)
    if "--stamp" in sys.argv:
        STAMP = True; sys.argv.remove("--stamp")
    txt = build()
    path = sys.argv[1] if len(sys.argv) > 1 else "cdna_kernels/%s.s" % NAME
    open(path, "w").write(txt)
    print("wrote", path, len(txt), "bytes")
```

```python
import sys, struct, math
from asmlib import *

NAME = "parallel_sum__compressed_kv_cla__geglu_ffn__prompt"
KN = NAME + "_kernel"
def f2u(x): return struct.unpack("<I", struct.pack("<f", x))[0]
def fh(x): return "0x%08x" % f2u(x)

XN_OFF, XN_SZ = 0, 2048 * 640 * 2
FL_OFF, FL_SZ = 3 << 20, 4096
KV_OFF, KV_SZ = 4 << 20, 32 << 20
HB_RT = 54 * 8192
HB_OFF, HB_SZ = 36 << 20, 16 * HB_RT
CX_RT = 128 * 8192
CX_OFF, CX_SZ = 44 << 20, 16 * CX_RT
EX_OFF, EX_SZ = 60 << 20, 64 * 4 * 3 * 20480
ST_OFF = 76 << 20
LDS_TOTAL = 163840
LFLAG = LDS_TOTAL - 16

sX, sCKV, sWQ, sWUK, sWUV, sWO, sWG, sWU, sWD, sOUT, sDBG, sWS = 4, 6, 8, 10, 12, 14, 18, 20, 22, 24, 26, 28
sW, sH, sI = 30, 31, 3
R0, R1, R2, R3, RF = 32, 36, 40, 44, 48
T0, T1, T2, T3 = 52, 53, 54, 55
SUB = 4224
WSTEP = 4 * SUB
OPT = {}
CODE = [32768]
STAMP = False
SC = " sc1"

def stamp(a, k, v=15):
    if not STAMP: return
    a("s_memrealtime s[100:101]\ns_waitcnt lgkmcnt(0)\nv_writelane_b32 v%d, s100, %d" % (v, 2 * k))
    a("s_memtime s[100:101]\ns_waitcnt lgkmcnt(0)\nv_writelane_b32 v%d, s100, %d" % (v, 2 * k + 1))
def stamp_out(a, v=15):
    if not STAMP: return
    srd(a, R0, sWS, ST_OFF, 1 << 20)
    a("s_lshl_b32 s%d, s2, 2\ns_add_u32 s%d, s%d, s%d\ns_lshl_b32 s%d, s%d, 8" % (T0, T0, T0, sW, T0, T0))
    a("v_lshlrev_b32 v1, 2, v0")
    a("buffer_store_dword v%d, v1, s[%d:%d], s%d offen" % (v, R0, R0 + 3, T0))

MF = "v_mfma_f32_16x16x32_bf16"
def reg(r, n=1): return ar(r - 256, n) if r >= 256 else vr(r, n)
A = lambda k: 256 + k
def mfma(d, a_, b_, c):
    return "%s %s, %s, %s, %s" % (MF, reg(d, 4), reg(a_, 4), reg(b_, 4), "0" if c is None else reg(c, 4))
def R(r): return "s[%d:%d]" % (r, r + 3)

class L(list):
    def __call__(self, s):
        self.extend(s.split("\n"))

def srd(a, r, ptr, off=0, size=0, off_s=None):
    if off:
        a("s_add_u32 s%d, s%d, 0x%x" % (r, ptr, off)); a("s_addc_u32 s%d, s%d, 0" % (r + 1, ptr + 1))
    else:
        a("s_mov_b32 s%d, s%d" % (r, ptr)); a("s_mov_b32 s%d, s%d" % (r + 1, ptr + 1))
    if off_s is not None:
        a("s_add_u32 s%d, s%d, s%d" % (r, r, off_s)); a("s_addc_u32 s%d, s%d, 0" % (r + 1, r + 1))
    a("s_mov_b32 s%d, %s" % (r + 2, size if isinstance(size, str) else "0x%x" % size))
    a("s_mov_b32 s%d, 0x20000" % (r + 3))

def stream(a, mf, gaps):
    assert len(gaps) <= len(mf), (len(gaps), len(mf))
    for k, m in enumerate(mf):
        a(m)
        if k < len(gaps):
            for x in gaps[k]: a(x)

def weave(a, lines, groups, lo=0.0, hi=1.0):
    n, m = len(lines), len(groups)
    at = {}
    for k, g in enumerate(groups): at.setdefault(min(n - 1, int((lo + (hi - lo) * k / max(m, 1)) * n)), []).extend(g)
    for k, x in enumerate(lines):
        for y in at.get(k, []): a(y)
        a(x)

def flat_dma(lst, tail=()):
    g = []
    for pre, ld in lst:
        x = list(pre)
        if x and "m0" in x[-1]: x.append("s_nop 0")
        g.append(x + [ld])
    g[-1] += list(tail)
    return g

def w_lane_parts(a, vWD, vRW, stride, t0, t1):
    a("v_lshrrev_b32 v%d, 5, v0" % t0)
    a("v_bfe_u32 v%d, v0, 2, 2" % t1)
    a("v_lshl_add_u32 v%d, v%d, 2, v%d" % (t0, t0, t1))
    a("v_mul_u32_u24 v%d, %s, v%d" % (vWD, stride, t0))
    a("v_bfe_u32 v%d, v0, 4, 1" % t0)
    a("v_lshl_add_u32 v%d, v%d, 6, v%d" % (vWD, t0, vWD))
    a("v_and_b32 v%d, 3, v0" % t0)
    a("v_lshl_add_u32 v%d, v%d, 4, v%d" % (vWD, t0, vWD))
    if vRW is not None:
        a("v_lshlrev_b32 v%d, 3, v%d" % (vRW, t0))
        a("v_lshl_add_u32 v%d, v%d, 6, v%d" % (vRW, t1, vRW))
        a("v_lshrrev_b32 v%d, 4, v0" % t0)
        a("v_mul_u32_u24 v%d, 1056, v%d" % (t0, t0))
        a("v_add_u32 v%d, v%d, v%d" % (vRW, vRW, t0))

def tr_reads(dst, vRW, base, nbl):
    off = base + (nbl >> 1) * 256 + (nbl & 1) * 32
    return ["ds_read_b64_tr_b16 %s, v%d offset:%d" % (reg(dst, 2), vRW, off),
            "ds_read_b64_tr_b16 %s, v%d offset:%d" % (reg(dst + 2, 2), vRW, off + 512)]

def pack_pair(a, b0, b1, tmp):
    src = []
    for k, b in enumerate((b0, b1)):
        if b >= 256:
            for r in range(4): a("v_accvgpr_read_b32 v%d, %s" % (tmp + r, reg(b + r)))
            src.append(tmp)
        else: src.append(b)
    d = src[0]
    a("v_cvt_pk_bf16_f32 v%d, v%d, v%d" % (d, src[0], src[0] + 1))
    a("v_cvt_pk_bf16_f32 v%d, v%d, v%d" % (d + 1, src[0] + 2, src[0] + 3))
    a("v_cvt_pk_bf16_f32 v%d, v%d, v%d" % (d + 2, src[1], src[1] + 1))
    a("v_cvt_pk_bf16_f32 v%d, v%d, v%d" % (d + 3, src[1] + 2, src[1] + 3))
    return d

def accreg(idx): return 16 + 4 * idx if idx < 60 else A(240 + 4 * (idx - 60))

def publish(a, soff, imm, tag, v=8):
    a("s_cmp_lg_u32 s%d, 0" % sW)
    a("s_cbranch_scc1 L%s_np" % tag)
    a("v_mov_b32 v%d, 1" % v)
    a("s_mov_b64 exec, 1")
    a("buffer_store_dword v%d, off, %s, s%d offset:%d sc1" % (v, R(RF), soff, imm))
    a("s_mov_b64 exec, -1")
    a("L%s_np:" % tag)

def spin(a, o, load, regs, want, tag, first=True):
    def check(x):
        for k in range(1, len(regs)): x("v_and_b32 v%d, v%d, v%d" % (regs[0], regs[0], regs[k]))
        x("v_cmp_gt_u32 vcc, %s, v%d" % (want, regs[0]))
    if first:
        check(a)
        a("s_mov_b32 s%d, 0x40000" % T3)
        a("s_nop 0")
        a("s_cbranch_vccnz L%s_ld" % tag)
    else:
        a("s_mov_b32 s%d, 0x40000" % T3)
        o = a
    o("L%s_ld:" % tag)
    o(load)
    o("s_waitcnt vmcnt(0)")
    check(o)
    o("s_sub_u32 s%d, s%d, 1" % (T3, T3))
    o("s_cbranch_scc1 L%s_ok" % tag)
    o("s_cbranch_vccnz L%s_ld" % tag)
    if first: o("s_branch L%s_ok" % tag)
    a("L%s_ok:" % tag)
    if OPT.get("inv"):
        a("buffer_inv sc1")
        a("s_waitcnt vmcnt(0)")

def spread(n, groups, start=0):
    groups = sorted(groups, key=lambda x: x[0])
    gaps = [[] for _ in range(n)]
    m = len(groups)
    last = start - 1
    w = n - start
    for k, (pos, ins) in enumerate(groups):
        if m <= w:
            g = max(start + int(pos * w), last + 1)
            g = min(g, n - (m - k))
        else:
            g = start + (k * w) // m
        gaps[g] += ins
        last = g
    return gaps

def can_ride(gap):
    kinds = [x.split("_")[0] for x in gap]
    if "buffer" in kinds: return False
    if all(k == "s" for k in kinds): return len(gap) < 3
    if "s" in kinds: return False
    if "ds" in kinds: return len(gap) == 1
    return True

def ride(gaps, ins, lo, hi, backwards=True):
    rng = list(range(hi, lo - 1, -1) if backwards else range(lo, hi + 1))
    g = next((g for g in rng if can_ride(gaps[g])), None)
    if g is None:
        g = next((g for g in rng if not any(x.startswith("buffer") for x in gaps[g])), hi if backwards else lo)
    k = 0
    while k < len(gaps[g]) and gaps[g][k].startswith("s_"): k += 1
    gaps[g].insert(k, ins)
    return g

def kernel(a):
    ool = L()
    a(kernel_header(KN))
    a("s_cmp_ge_u32 s2, 256")
    a("s_cbranch_scc1 Lend")
    a("s_load_dwordx16 s[4:19], s[0:1], 0")
    a("s_load_dwordx8 s[20:27], s[0:1], 64")
    a("s_load_dwordx2 s[28:29], s[0:1], 96")
    if not OPT.get("nocode"):
        a("s_getpc_b64 s[%d:%d]" % (T0, T1))
        a("s_bfe_u32 s%d, s2, 0x10003" % T2)
        a("s_lshl_b32 s%d, s%d, 15" % (T2, T2))
        a("v_lshl_add_u32 v2, v0, 7, s%d" % T2)
        a("v_min_u32 v2, %d, v2" % (CODE[0] - 256))
        a("v_mov_b32 v3, s%d" % T1)
        a("v_add_co_u32 v2, vcc, s%d, v2" % T0)
        a("s_nop 1")
        a("v_addc_co_u32 v3, vcc, 0, v3, vcc")
        a("global_load_dword v14, v[2:3], off")
    a("v_lshrrev_b32 v1, 6, v0")
    a("v_and_b32 v0, 63, v0")
    a("v_readfirstlane_b32 s%d, v1" % sW)
    a("s_and_b32 s%d, s2, 31" % sH)
    a("s_lshr_b32 s%d, s2, 5" % sI)
    vL16, vA0, vA1, vWD, vRA0, vRA1, vRW = 1, 2, 3, 4, 5, 6, 7
    sAo, sAm, sWo, sWm, sDl, sDm, sCnt, sSt8, sEvt = 64, 65, 66, 67, 68, 69, 63, 70, 71
    sFK, sFW = 16, 17
    LA, LW, LLN = 0, 65536, 65536 + 4 * WSTEP
    rA, rW, rX, rO = R0, R1, R2, R3
    a("v_lshrrev_b32 v8, 5, v0")
    a("v_mul_u32_u24 v8, 1280, v8")
    a("v_and_b32 v9, 31, v0")
    a("v_lshl_add_u32 v8, v9, 3, v8")
    a("s_lshl_b32 s%d, s2, 2" % T2)
    a("s_add_u32 s%d, s%d, s%d" % (T2, T2, sW))
    a("s_mul_i32 s%d, s%d, 2560" % (T2, T2))
    w_lane_parts(a, vWD, vRW, "0x2000", 10, 11)
    a("v_and_b32 v13, 7, v0")
    a("v_lshlrev_b32 v13, 2, v13")
    a("v_lshlrev_b32 v%d, 4, v0" % vL16)
    a("v_lshrrev_b32 v10, 4, v0")
    a("v_and_b32 v11, 7, v0")
    a("v_xor_b32 v10, v10, v11")
    a("v_lshlrev_b32 v10, 4, v10")
    a("v_lshrrev_b32 v11, 3, v0")
    a("v_lshl_add_u32 v%d, v11, 10, v10" % vA0)
    a("v_xor_b32 v%d, 64, v%d" % (vA1, vA0))
    a("s_and_b32 s%d, s%d, 1" % (T0, sW))
    a("s_lshl_b32 s%d, s%d, 7" % (sWo, T0))
    a("s_lshl_b32 s%d, s%d, 8" % (T1, sH))
    a("s_add_u32 s%d, s%d, s%d" % (sWo, sWo, T1))
    a("s_mul_i32 s%d, s%d, %d" % (sWm, sW, SUB))
    a("s_add_u32 s%d, s%d, %d" % (sWm, sWm, LW))
    a("s_mul_i32 s%d, s%d, %d" % (T1, T0, SUB))
    a("s_add_u32 s%d, s%d, %d" % (T1, T1, LW))
    a("v_add_u32 v%d, s%d, v%d" % (vRW, T1, vRW))
    a("s_lshl_b32 s%d, s%d, 18" % (sAo, sI))
    a("s_lshl_b32 s%d, s%d, 16" % (T1, sW))
    a("s_add_u32 s%d, s%d, s%d" % (sAo, sAo, T1))
    a("s_lshl_b32 s%d, s%d, 13" % (sAm, sW))
    a("s_mov_b32 s%d, 0x10000" % sSt8)
    a("s_waitcnt lgkmcnt(0)")
    stamp(a, 0)
    srd(a, rX, sX, size=XN_SZ)
    for j in range(5):
        a("buffer_load_dwordx2 %s, v8, %s, s%d offen offset:%d" % (vr(16 + 2 * j, 2), R(rX), T2, j * 256))
    srd(a, rA, sCKV, size=2048 * 1024)
    a("s_cmp_lt_u32 s%d, 2" % sW)
    a("s_cselect_b32 s%d, s%d, s%d" % (rW, sWUK, sWUV))
    a("s_cselect_b32 s%d, s%d, s%d" % (rW + 1, sWUK + 1, sWUV + 1))
    a("s_mov_b32 s%d, 0x%x" % (rW + 2, 512 * 8192))
    a("s_mov_b32 s%d, 0x20000" % (rW + 3))
    def dmaW(slot=0):
        out = []
        for g in range(4):
            pre = ["s_add_u32 m0, s%d, %d" % (sWm, slot * WSTEP + g * 1056)]
            if g: pre.append("s_add_u32 s%d, s%d, s%d" % (sWo, sWo, sSt8))
            out.append((pre, "buffer_load_dwordx4 v%d, %s, s%d offen lds" % (vWD, R(rW), sWo)))
        return out, ["s_add_u32 s%d, s%d, s%d" % (sWo, sWo, sSt8)]
    def dmaA():
        out = []
        for p in range(8):
            pre = ["s_add_u32 m0, s%d, %d" % (sAm, p * 1024)]
            if p: pre.append("s_add_u32 s%d, s%d, 0x2000" % (sAo, sAo))
            out.append((pre, "buffer_load_dwordx4 v%d, %s, s%d offen lds" % (vA1 if p & 1 else vA0, R(rA), sAo)))
        return out, ["s_sub_u32 s%d, s%d, %d" % (sAo, sAo, 7 * 8192 - 128), "s_xor_b32 s%d, s%d, 0x8000" % (sAm, sAm)]
    for g in flat_dma(*dmaW(0)) + flat_dma(*dmaA()):
        for x in g: a(x)
    later = flat_dma(*dmaW(1)) + flat_dma(*dmaW(2)) + flat_dma(*dmaA()) + flat_dma(*dmaW(3))
    rW2, sWo2, sSt2 = 96, 79, 80
    a("s_cmp_lt_u32 s%d, 3" % sW)
    a("s_cselect_b32 s%d, s%d, s%d" % (rW2, sWG, sWU))
    a("s_cselect_b32 s%d, s%d, s%d" % (rW2 + 1, sWG + 1, sWU + 1))
    a("s_cmp_lt_u32 s%d, 27" % sH)
    a("s_cselect_b32 s%d, 0x%x, 0" % (T2, 640 * 3456))
    a("s_lshl_b32 s%d, s%d, 7" % (T1, sH))
    a("s_lshl_b32 s%d, s%d, 1" % (T0, sH))
    a("s_add_u32 s%d, s%d, s%d" % (T0, T0, sW))
    a("s_lshl_b32 s%d, s%d, 7" % (T0, T0))
    a("s_cmp_lt_u32 s%d, 2" % sW)
    a("s_cselect_b32 s%d, s%d, s%d" % (rW2, sWQ, rW2))
    a("s_cselect_b32 s%d, s%d, s%d" % (rW2 + 1, sWQ + 1, rW2 + 1))
    a("s_cselect_b32 s%d, 0x%x, s%d" % (rW2 + 2, 640 * 8192, T2))
    a("s_mov_b32 s%d, 0x20000" % (rW2 + 3))
    a("s_cselect_b32 s%d, s%d, s%d" % (sWo2, T0, T1))
    a("s_mov_b32 s%d, 8192" % sSt2)
    a("s_cselect_b32 s%d, s%d, 3456" % (sSt2, sSt2))
    sTo, sTs, vT2 = 81, 82, 14
    a("s_mul_i32 s%d, s%d, 12" % (T0, sI))
    a("s_mul_i32 s%d, s%d, s%d" % (T0, T0, sSt2))
    a("s_add_u32 s%d, s%d, s%d" % (sTo, T0, sWo2))
    a("s_mul_i32 s%d, s%d, 96" % (sTs, sSt2))
    srd(a, RF, sWS, FL_OFF, FL_SZ)
    srd(a, rO, sDBG, size=256)
    a("s_lshl_b32 s%d, s%d, 3" % (sFK, sH))
    a("s_add_u32 s%d, s%d, s%d" % (sFK, sFK, sI))
    a("s_lshl_b32 s%d, s%d, 2" % (sFK, sFK))
    a("s_lshl_b32 s%d, s2, 2" % sFW)
    a("s_cmp_lg_u32 s%d, 3" % sW)
    a("s_cbranch_scc1 Lnoclr")
    a("v_mov_b32 v9, 0")
    a("s_mov_b64 exec, 1")
    a("buffer_store_dword v9, off, %s, s%d sc1" % (R(RF), sFK))
    for k in (1, 2, 3): a("buffer_store_dword v9, off, %s, s%d offset:%d sc1" % (R(RF), sFW, k * 1024))
    a("s_mov_b64 exec, -1")
    a("s_waitcnt vmcnt(16)")
    a("s_branch Lclr")
    a.label("Lnoclr")
    a("s_waitcnt vmcnt(12)")
    a.label("Lclr")
    stamp(a, 1)
    b = L()
    X, D = 26, 46
    for k in range(10):
        b("v_lshlrev_b32 v%d, 16, v%d" % (X + 2 * k, 16 + k))
        b("v_and_b32 v%d, 0xffff0000, v%d" % (X + 2 * k + 1, 16 + k))
    def reduce32(v, t):
        for n in (8, 4, 2, 1):
            b("s_nop 1")
            b("v_add_f32_dpp v%d, v%d, v%d row_ror:%d row_mask:0xf bank_mask:0xf" % (v, v, v, n))
        b("v_mov_b32 v%d, v%d" % (t, v))
        b("s_nop 1")
        b("v_permlane16_swap_b32 v%d, v%d" % (v, t))
        b("v_add_f32 v%d, v%d, v%d" % (v, v, t))
        b("v_mul_f32 v%d, %s, v%d" % (v, fh(1.0 / 640), v))
    b("v_add_f32 v8, v%d, v%d" % (X, X + 1))
    b("v_add_f32 v9, v%d, v%d" % (X + 2, X + 3))
    for k in range(4, 20, 2):
        b("v_add_f32 v8, v8, v%d" % (X + k)); b("v_add_f32 v9, v9, v%d" % (X + k + 1))
    b("v_add_f32 v8, v8, v9")
    reduce32(8, 9)
    for k in range(20): b("v_sub_f32 v%d, v%d, v8" % (D + k, X + k))
    b("v_mul_f32 v10, v%d, v%d" % (D, D)); b("v_mul_f32 v11, v%d, v%d" % (D + 1, D + 1))
    for k in range(2, 20, 2):
        b("v_fmac_f32 v10, v%d, v%d" % (D + k, D + k)); b("v_fmac_f32 v11, v%d, v%d" % (D + k + 1, D + k + 1))
    b("v_add_f32 v10, v10, v11")
    reduce32(10, 11)
    b("v_cvt_pk_bf16_f32 v9, v8, v10")
    b("v_lshlrev_b32 v8, 16, v9")
    b("v_and_b32 v10, 0xffff0000, v9")
    b("v_add_f32 v10, %s, v10" % fh(1e-5))
    b("v_cvt_pk_bf16_f32 v10, v10, v10")
    b("v_lshlrev_b32 v10, 16, v10")
    b("v_sqrt_f32 v10, v10")
    for k in range(20): b("v_sub_f32 v%d, v%d, v8" % (D + k, X + k))
    b("v_cvt_pk_bf16_f32 v10, v10, v10")
    b("v_lshlrev_b32 v10, 16, v10")
    b("v_rcp_f32 v10, v10")
    for k in range(10): b("v_cvt_pk_bf16_f32 v%d, v%d, v%d" % (16 + k, D + 2 * k, D + 2 * k + 1))
    for k in range(10):
        b("v_lshlrev_b32 v%d, 16, v%d" % (X + 2 * k, 16 + k))
        b("v_and_b32 v%d, 0xffff0000, v%d" % (X + 2 * k + 1, 16 + k))
    for k in range(20): b("v_mul_f32 v%d, v%d, v10" % (X + k, X + k))
    for k in range(10): b("v_cvt_pk_bf16_f32 v%d, v%d, v%d" % (16 + k, X + 2 * k, X + 2 * k + 1))
    b("v_bfe_u32 v8, v0, 1, 4")
    b("v_lshlrev_b32 v8, 7, v8")
    b("v_and_b32 v9, 1, v0")
    b("v_lshl_add_u32 v8, v9, 3, v8")
    b("v_lshrrev_b32 v9, 5, v0")
    b("v_lshl_add_u32 v8, v9, 4, v8")
    b("s_lshl_b32 s%d, s%d, 5" % (T0, sW))
    b("s_add_u32 s%d, s%d, %d" % (T0, T0, LLN))
    b("v_add_u32 v8, s%d, v8" % T0)
    for j in range(5): b("ds_write_b64 v8, %s offset:%d" % (vr(16 + 2 * j, 2), j * 2048))
    b("v_and_b32 v10, 15, v0")
    b("v_lshrrev_b32 v11, 1, v10")
    b("v_lshrrev_b32 v12, 4, v0")
    b("v_xor_b32 v11, v11, v12")
    b("v_lshlrev_b32 v11, 4, v11")
    b("v_lshl_add_u32 v11, v10, 7, v11")
    b("s_lshr_b32 s%d, s%d, 1" % (T1, sW))
    b("s_lshl_b32 s%d, s%d, 14" % (T1, T1))
    b("v_add_u32 v%d, s%d, v11" % (vRA0, T1))
    b("v_xor_b32 v%d, 64, v%d" % (vRA1, vRA0))
    b("v_cmp_gt_u32 vcc, 12, v0")
    b("v_mul_u32_u24 v%d, s%d, v0" % (vT2, sSt2))
    b("v_mov_b32 v11, 0x7fffffff")
    b("v_cndmask_b32 v%d, v11, v%d, vcc" % (vT2, vT2))
    weave(a, b, later)
    srd(a, rX, sWS, XN_OFF, XN_SZ)
    a("s_lshl_b32 s%d, s%d, 10" % (T0, sW))
    a("s_add_u32 s%d, s%d, %d" % (T0, T0, LLN))
    a("v_add_u32 v8, s%d, v%d" % (T0, vL16))
    a("v_lshrrev_b32 v9, 3, v0")
    a("v_lshlrev_b32 v9, 8, v9")
    a("v_and_b32 v10, 7, v0")
    a("v_lshl_add_u32 v9, v10, 4, v9")
    a("s_lshr_b32 s%d, s2, 1" % T0)
    a("s_mul_i32 s%d, s%d, 20480" % (T0, T0))
    a("s_and_b32 s%d, s2, 1" % T1)
    a("s_lshl_b32 s%d, s%d, 7" % (T1, T1))
    a("s_add_u32 s%d, s%d, s%d" % (T0, T0, T1))
    a("s_lshl_b32 s%d, s%d, 11" % (T1, sW))
    a("s_add_u32 s%d, s%d, s%d" % (T0, T0, T1))
    a("s_add_u32 s%d, s%d, 8192" % (T1, T0))
    a("s_add_u32 s%d, s%d, 16384" % (T2, T0))
    a("s_cmp_lt_u32 s%d, 2" % sW)
    a("s_cselect_b32 s%d, s%d, 0x%x" % (T2, T2, XN_SZ))
    a("s_cselect_b32 s%d, 0x2000, 0" % T3)
    a("v_add_u32 v10, s%d, v8" % T3)
    a("s_waitcnt vmcnt(20) lgkmcnt(0)")
    a("s_barrier")
    FA = lambda p, rb: A(64 * p + 4 * rb)
    FW = lambda p, j: A(64 * p + 32 + 4 * j)
    def reads1(p, vra):
        g = []
        for k in range(4):
            g.append(["ds_read_b128 %s, v%d offset:%d" % (reg(FA(p, rb), 4), vra, LA + rb * 2048) for rb in (2 * k, 2 * k + 1)])
            g.append(tr_reads(FW(p, 2 * k), vRW, (k >> 1) * 2 * SUB, (2 * k) & 3))
            g.append(tr_reads(FW(p, 2 * k + 1), vRW, (k >> 1) * 2 * SUB, (2 * k + 1) & 3))
        return g
    XS = A(128)
    a("ds_read_b128 %s, v8" % reg(XS, 4))
    a("ds_read_b128 %s, v8 offset:4096" % reg(XS + 4, 4))
    a("ds_read_b128 %s, v10" % reg(XS + 8, 4))
    for grp in reads1(0, vRA0):
        for x in grp: a(x)
    a("s_mov_b32 s%d, %d" % (sDl, WSTEP))
    a("s_mov_b32 s%d, %d" % (sDm, WSTEP))
    a("s_mov_b32 s%d, 0" % sCnt)
    a("s_mov_b32 s%d, 2" % sEvt)
    a("v_xor_b32 v%d, 0x8000, v%d" % (vRA0, vRA0))
    a("v_add_u32 v%d, %d, v%d" % (vRW, WSTEP, vRW))
    a("s_waitcnt vmcnt(16) lgkmcnt(0)")
    a("s_barrier")
    stamp(a, 2)
    TCH = 0 if OPT.get("notouch2") else 1
    XORC = WSTEP ^ ((-3 * WSTEP) & 0xFFFFFFFF)
    def step1(p, first=False):
        mf = []
        for rb in range(8):
            for j in (range(8) if rb % 2 == 0 else range(7, -1, -1)):
                d = accreg(rb * 8 + j)
                c = None if first else d
                mf.append(mfma(d, FW(p, j), FA(p, rb), c) if j < 4 else mfma(d, FA(p, rb), FW(p, j), c))
        gaps = [[] for _ in range(64)]
        rd = reads1(1 - p, vRA1 if p == 0 else vRA0)
        dm, tails = [], []
        if p == 1:
            l, t = dmaA(); dm += l; tails.append((8, t))
        l, t = dmaW(); dm += l; tails.append((len(dm), t))
        for k, grp in enumerate(rd): gaps[4 * k + 2] += grp
        sp = 4 if p == 1 else 12
        for k, (pre, ld) in enumerate(dm):
            gaps[sp * k] += pre; gaps[sp * k + 1].append(ld)
        for n, t in tails: gaps[sp * (n - 1) + 3] += t
        if first:
            for k, t in enumerate((T0, T1, T2)):
                gaps[5 + 12 * k].append("buffer_store_dwordx4 %s, v9, %s, s%d offen%s" % (reg(XS + 4 * k, 4), R(rX), t, SC))
        if p == 0:
            gaps[52] += ["s_add_u32 s%d, s%d, %d" % (sWm, sWm, WSTEP), "v_add_u32 v%d, s%d, v%d" % (vRW, sDl, vRW), "v_xor_b32 v%d, 0x8000, v%d" % (vRA1, vRA1)]
            gaps[53] += ["s_xor_b32 s%d, s%d, 0x%x" % (sDl, sDl, XORC), "s_cmp_lt_u32 s%d, 6" % sCnt, "s_cselect_b32 s%d, 0x%x, 0" % (rA + 2, 2048 * 1024)]
            gaps[63] += ["s_waitcnt vmcnt(%d) lgkmcnt(0)" % (11 if first else 8 + TCH), "s_barrier"]
        else:
            gaps[52] += ["s_add_u32 s%d, s%d, s%d" % (sWm, sWm, sDm), "v_add_u32 v%d, %d, v%d" % (vRW, WSTEP, vRW), "v_xor_b32 v%d, 0x8000, v%d" % (vRA0, vRA0)]
            gaps[53] += ["s_xor_b32 s%d, s%d, 0x%x" % (sDm, sDm, XORC), "s_add_u32 s%d, s%d, 1" % (sCnt, sCnt)]
            gaps[54] += ["s_cmp_eq_u32 s%d, s%d" % (sCnt, sEvt), "s_cbranch_scc1 Lp1evt", "Lp1ret:"]
            gaps[55] += ["s_cmp_lt_u32 s%d, 8" % sCnt]
            if TCH:
                gaps[49].append("buffer_load_dword a224, v%d, %s, s%d offen" % (vT2, R(rW2), sTo))
                gaps[50].append("s_add_u32 s%d, s%d, s%d" % (sTo, sTo, sTs))
            gaps[63] += ["s_waitcnt vmcnt(%d) lgkmcnt(0)" % (16 + TCH), "s_barrier"]
        stream(a, mf, gaps)
    step1(0, True)
    a("s_branch Lp1odd")
    a(".p2align 6")
    a.label("Lp1even")
    step1(0)
    a.label("Lp1odd")
    step1(1)
    a("s_cbranch_scc1 Lp1even")
    stamp(a, 3)
    o = ool
    o("Lp1evt:")
    o("s_cmp_eq_u32 s%d, 2" % sCnt)
    o("s_cbranch_scc0 Lp1e6")
    o("s_mov_b32 s%d, 6" % sEvt)
    o("s_cmp_lg_u32 s%d, 0" % sW)
    o("s_cbranch_scc1 Lp1ret")
    o("v_mov_b32 v8, 1")
    o("s_mov_b64 exec, 1")
    o("buffer_atomic_add v8, off, %s, 0 sc1" % R(rO))
    o("s_mov_b64 exec, -1")
    o("s_branch Lp1ret")
    o("Lp1e6:")
    o("s_cmp_eq_u32 s%d, 6" % sCnt)
    o("s_cbranch_scc0 Lp1e7")
    o("s_mov_b32 s%d, 7" % sEvt)
    for k in range(3): o("s_mov_b32 s%d, s%d" % (rW + k, rW2 + k))
    o("s_mov_b32 s%d, s%d" % (sWo, sWo2))
    o("s_lshl_b32 s%d, s%d, 3" % (sSt8, sSt2))
    w_lane_parts(o, vWD, None, "s%d" % sSt2, 10, 11)
    o("s_branch Lp1ret")
    o("Lp1e7:")
    pollH = "buffer_load_dword v12, off, %s, 0 sc1" % R(rO)
    o(pollH)
    o("s_branch Lp1ret")
    sXo = [72, 73, 74, 75]
    sKs, sVs, sTd = 76, 77, 78
    PK = lambda k: A(k)
    FX = lambda st, qb: A(128 + 16 * st + 4 * qb)
    FW2 = lambda n: A(192 + 4 * (n & 7))
    spin(a, ool, pollH, [12], "0x100", "h1")
    a("s_lshl_b32 s%d, s%d, 3" % (T0, sI))
    a("s_add_u32 s%d, s%d, s%d" % (T1, T0, sW))
    a("s_mul_i32 s%d, s%d, 20480" % (sXo[0], T1))
    a("s_add_u32 s%d, s%d, %d" % (sXo[1], sXo[0], 4 * 20480))
    a("s_sub_u32 s%d, s%d, s%d" % (T1, sW, T0))
    a("s_add_u32 s%d, s%d, 120" % (T1, T1))
    a("s_mul_i32 s%d, s%d, 20480" % (sXo[2], T1))
    a("s_add_u32 s%d, s%d, %d" % (sXo[3], sXo[2], 4 * 20480))
    def ldX(st, imm):
        return ["buffer_load_dwordx4 %s, v%d, %s, s%d offen offset:%d%s" % (reg(FX(st, qb), 4), vL16, R(rX), sXo[qb], imm, SC) for qb in range(4)]
    for x in ldX(0, 0): a(x)
    a("s_lshl_b32 s%d, s%d, 20" % (T0, sH))
    srd(a, rO, sWS, KV_OFF, 0 if OPT.get("nokv") else 1 << 20, T0)
    a("s_lshr_b32 s%d, s%d, 1" % (T0, sW))
    a("s_lshl_b32 s%d, s%d, 1" % (T1, sI))
    a("s_add_u32 s%d, s%d, s%d" % (T0, T0, T1))
    a("s_lshl_b32 s%d, s%d, 16" % (T0, T0))
    a("s_and_b32 s%d, s%d, 1" % (T1, sW))
    a("s_mul_i32 s%d, s%d, %d" % (T2, T1, SUB))
    a("s_add_u32 s%d, s%d, %d" % (T2, T2, WSTEP))
    a("v_subrev_u32 v%d, s%d, v%d" % (vRW, T2, vRW))
    a("s_lshl_b32 s%d, s%d, 11" % (T1, T1))
    a("s_add_u32 s%d, s%d, s%d" % (sKs, T0, T1))
    a("s_add_u32 s%d, s%d, s%d" % (sVs, sKs, T1))
    a("s_add_u32 s%d, s%d, 16384" % (sVs, sVs))
    a("v_add_u32 v%d, 4096, v%d" % (vA0, vL16))
    vL16b = vA0
    def kv_store(src, f):
        if f < 4: return "buffer_store_dwordx4 %s, v%d, %s, s%d offen offset:%d%s" % (reg(src, 4), vL16b if f >> 1 else vL16, R(rO), sKs, (f & 1) * 1024, SC)
        return "buffer_store_dwordx4 %s, v%d, %s, s%d offen offset:%d%s" % (reg(src, 4), vL16, R(rO), sVs, (f - 4) * 1024, SC)
    def rd2(n, slot): return tr_reads(FW2(n), vRW, slot * WSTEP + ((n & 15) >> 2) * SUB, n & 3)
    b = L()
    for grp in (1, 2, 3, 0):
        for f in range(8):
            if f < 4: b0 = (2 * grp + (f >> 1)) * 8 + 2 * (f & 1); b1 = b0 + 1
            else: b0 = 2 * grp * 8 + f; b1 = b0 + 8
            d = pack_pair(b, accreg(b0), accreg(b1), 8)
            if grp == 0: b(kv_store(d, f))
            else:
                for r in range(4): b("v_accvgpr_write_b32 %s, v%d" % (reg(PK(32 * (grp - 1) + 4 * f + r)), d + r))
    weave(a, b, [[x] for x in ldX(1, 1024) + ldX(2, 2048)] + [rd2(n, 0) for n in range(6)], 0.05, 0.75)
    for qb in range(4): a("s_add_u32 s%d, s%d, 3072" % (sXo[qb], sXo[qb]))
    a("s_add_u32 s%d, s%d, 8192" % (sKs, sKs))
    a("s_add_u32 s%d, s%d, 8192" % (sVs, sVs))
    a("s_mov_b32 s%d, 24576" % sTd)
    a("s_mov_b32 s%d, 0" % sCnt)
    a("s_waitcnt vmcnt(16) lgkmcnt(8)")
    stamp(a, 4)
    acc2 = lambda j, qb: accreg(((j + 15) & 15) * 4 + qb)
    def step2(u, first=False):
        mf = []
        for j in range(16):
            for qb in (range(4) if j % 2 == 0 else range(3, -1, -1)):
                d = acc2(j, qb)
                mf.append(mfma(d, FW2(j), FX(u, qb), None if first else d))
        gaps = [[] for _ in range(64)]
        for n in range(16):
            gaps[4 * n + 1] += rd2(n + 6, u if n + 6 < 16 else (u + 1) & 3)
        for m in range(1, 9): gaps[8 * m - 1].append("s_waitcnt lgkmcnt(8)")
        for k, ld in enumerate(ldX((u + 3) & 3, u * 1024)): gaps[2 + 4 * k].append(ld)
        mv = []
        for k in range(2):
            f = 2 * u + k
            gaps[18 + 8 * k].append(kv_store(PK(4 * f), f))
            for lvl in range(2):
                mv += ["v_accvgpr_mov_b32 %s, %s" % (reg(PK(32 * lvl + 4 * f + r)), reg(PK(32 * lvl + 32 + 4 * f + r))) for r in range(4)]
        for k, g in enumerate((22, 23, 24, 27, 30, 31, 32, 34)): gaps[g] += mv[2 * k:2 * k + 2]
        gaps[40] += ["s_waitcnt vmcnt(16)", "s_barrier"]
        if not first:
            lst, tail = dmaW((u + 3) & 3)
            for k, (pre, ld) in enumerate(lst):
                gaps[42 + 4 * k] += pre; gaps[44 + 4 * k].append(ld)
            gaps[58] += tail
        if u == 0:
            gaps[59] += ["s_cmp_lt_u32 s%d, 4" % sCnt, "s_cselect_b32 s%d, 0x%x, 0" % (rX + 2, XN_SZ)]
        if u == 1:
            gaps[59] += ["s_cmp_ge_u32 s%d, 3" % sCnt, "s_cbranch_scc1 Lp2evt", "Lp2ret:"]
        if u == 3:
            gaps[35] += ["s_add_u32 s%d, s%d, 4096" % (sXo[qb], sXo[qb]) for qb in range(3)]
            gaps[36] += ["s_add_u32 s%d, s%d, 4096" % (sXo[3], sXo[3]), "s_add_u32 s%d, s%d, s%d" % (sKs, sKs, sTd), "s_add_u32 s%d, s%d, s%d" % (sVs, sVs, sTd)]
            gaps[38] += ["s_xor_b32 s%d, s%d, %d" % (sTd, sTd, 24576 ^ 8192), "s_cmp_lt_u32 s%d, 2" % sCnt, "s_cselect_b32 s%d, 0x%x, 0" % (rO + 2, 0 if OPT.get("nokv") else 1 << 20)]
            gaps[59] += ["s_add_u32 s%d, s%d, 1" % (sCnt, sCnt), "s_cmp_lt_u32 s%d, 5" % sCnt]
        stream(a, mf, gaps)
    step2(0, True)
    a("s_branch Lp2s1")
    a(".p2align 6")
    a.label("Lp2s0")
    step2(0)
    a.label("Lp2s1")
    step2(1); step2(2); step2(3)
    a("s_cbranch_scc1 Lp2s0")
    stamp(a, 5)
    o("Lp2evt:")
    o("s_cmp_eq_u32 s%d, 3" % sCnt)
    o("s_cbranch_scc0 Lp2e4")
    publish(o, sFK, 0, "pk")
    o("s_branch Lp2ret")
    o("Lp2e4:")
    o("s_lshl_b32 s%d, s%d, 5" % (T2, sH))
    pollK = "buffer_load_dword v12, v13, %s, s%d offen sc1" % (R(RF), T2)
    o(pollK)
    o("s_branch Lp2ret")
    rKV, rHB, rCX = R0, R1, R2
    sAh, sAc = [56, 57], [58, 59]
    sKo, sKm, sSlot, sRedo, sBad = 60, 61, 62, 96, 97
    sM = 64
    vRD, vNI = 2, 4
    a("s_waitcnt vmcnt(0) lgkmcnt(0)")
    a("s_barrier")
    spin(a, ool, pollK, [12], "1", "kv")
    a("s_lshl_b32 s%d, s%d, 20" % (T0, sH))
    a("s_sub_u32 s%d, 16, s%d" % (T1, sI))
    a("s_lshl_b32 s%d, s%d, 16" % (T1, T1))
    srd(a, rKV, sWS, KV_OFF, "s%d" % T1, T0)
    srd(a, rHB, sWS, HB_OFF, HB_SZ)
    srd(a, rCX, sWS, CX_OFF, CX_SZ)
    a("s_lshl_b32 s%d, s%d, 10" % (T0, sW))
    a("s_lshl_b32 s%d, s%d, 14" % (T1, sH))
    a("s_add_u32 s%d, s%d, s%d" % (T2, T0, T1))
    a("s_add_u32 s%d, s%d, s%d" % (T3, T2, T1))
    a("s_sub_u32 s%d, 15, s%d" % (T0, sI))
    for k, blk in enumerate((sI, T0)):
        a("s_mul_i32 s%d, s%d, %d" % (sAh[k], blk, HB_RT))
        a("s_add_u32 s%d, s%d, s%d" % (sAh[k], sAh[k], T2))
        a("s_lshl_b32 s%d, s%d, 20" % (sAc[k], blk))
        a("s_add_u32 s%d, s%d, s%d" % (sAc[k], sAc[k], T3))
    def kv_ld(imm): return "buffer_load_dwordx4 v%d, %s, s%d offen offset:%d%s lds" % (vL16, R(rKV), sKo, imm, SC)
    def kv_first():
        g = [["s_lshl_b32 s%d, s%d, 12" % (sKo, sW), "s_add_u32 m0, s%d, 16384" % sKo, "s_lshl_b32 s%d, s%d, 13" % (sKm, sW), kv_ld(0)]]
        g += [[kv_ld(q * 1024)] for q in range(1, 4)]
        g[-1].append("s_add_u32 s%d, s%d, 16384" % (sKo, sKm))
        for st in range(3):
            for hf in range(2):
                g.append(["s_add_u32 m0, s%d, %d" % (sKm, (st + 1) * 32768 + hf * 4096), "s_nop 0", kv_ld(0)])
                g += [[kv_ld(q * 1024)] for q in range(1, 4)]
                g[-1].append("s_add_u32 s%d, s%d, %d" % (sKo, sKo, 4096 if hf == 0 else 32768 - 4096))
        g[-1].append("s_mov_b32 m0, s%d" % sKm)
        return g
    kvg = kv_first()
    a("s_cmp_gt_u32 s%d, 26" % sH)
    a("s_cbranch_scc1 Lnogu")
    c0 = -2.0 * math.sqrt(2.0 / math.pi) * math.log2(math.e)
    a("s_mov_b32 s%d, %s" % (T2, fh(c0 * 0.044715)))
    a("s_mov_b32 s%d, %s" % (T3, fh(c0)))
    b = L()
    for qb in range(4):
        for s2 in range(2):
            blks = [(acc2(8 + 2 * s2 + k, qb), acc2(12 + 2 * s2 + k, qb), 6 + 4 * k) for k in range(2)]
            prs = [(g + r, u + r, t + r) for g, u, t in blks for r in (0, 2)]
            for g, u, t in prs: b("v_pk_mul_f32 %s, %s, %s" % (vr(t, 2), vr(g, 2), vr(g, 2)))
            for g, u, t in prs: b("v_pk_fma_f32 %s, %s, s[%d:%d], s[%d:%d] op_sel:[0,0,1] op_sel_hi:[1,0,1]" % (vr(t, 2), vr(t, 2), T2, T3, T2, T3))
            for g, u, t in prs: b("v_pk_mul_f32 %s, %s, %s" % (vr(t, 2), vr(t, 2), vr(g, 2)))
            for g, u, t in prs:
                b("v_exp_f32 v%d, v%d" % (t, t)); b("v_exp_f32 v%d, v%d" % (t + 1, t + 1))
            for g, u, t in prs: b("v_pk_mul_f32 %s, %s, %s" % (vr(g, 2), vr(g, 2), vr(u, 2)))
            for g, u, t in prs: b("v_pk_add_f32 %s, %s, 1.0 op_sel_hi:[1,0]" % (vr(t, 2), vr(t, 2)))
            for g, u, t in prs:
                b("v_rcp_f32 v%d, v%d" % (t, t)); b("v_rcp_f32 v%d, v%d" % (t + 1, t + 1))
            b("s_add_u32 s%d, s%d, %d" % (T0, sAh[qb >> 1], (qb & 1) * 4096 + s2 * 8192))
            for g, u, t in prs: b("v_pk_mul_f32 %s, %s, %s" % (vr(g, 2), vr(g, 2), vr(t, 2)))
            d = pack_pair(b, blks[0][0], blks[1][0], None)
            b("buffer_store_dwordx4 %s, v%d, %s, s%d offen%s" % (vr(d, 4), vL16, R(rHB), T0, SC))
    weave(a, b, kvg[:12], 0.0, 0.6)
    a.label("Lgud")
    o("Lnogu:")
    for g in kvg[:12]:
        for x in g: o(x)
    o("s_branch Lgud")
    QF = lambda qb, s: A(16 * qb + 4 * s)
    a("s_mov_b32 s%d, %s" % (T2, fh(128 ** -0.5 * math.log2(math.e))))
    b = L()
    for qb in range(4):
        for s in range(4):
            src = []
            for k in range(2):
                r0 = acc2(2 * s + k, qb)
                if r0 >= 256:
                    for r in range(4): b("v_accvgpr_read_b32 v%d, %s" % (8 + r, reg(r0 + r)))
                    r0 = 8
                for r in (0, 2): b("v_pk_mul_f32 %s, %s, s[%d:%d] op_sel_hi:[1,0]" % (vr(r0 + r, 2), vr(r0 + r, 2), T2, T3))
                src.append(r0)
            d = pack_pair(b, src[0], src[1], None)
            for r in range(4): b("v_accvgpr_write_b32 %s, v%d" % (reg(QF(qb, s) + r), d + r))
    CI = lambda qb: 16 + 4 * qb
    ZA, ZB = 32, 40
    SB = lambda buf, qb, kb: 48 + 32 * buf + 8 * qb + 4 * kb
    OA = lambda qb, db: 112 + 32 * qb + 4 * db
    KF = lambda n: A(64 + 4 * n)
    VF = lambda n: A(96 + 4 * n)
    LA_ = lambda qb: A(128 + 4 * qb)
    ONES = A(144)
    b("v_and_b32 v8, 15, v0")
    b("v_lshrrev_b32 v9, 4, v0")
    b("v_lshlrev_b32 v9, 2, v9")
    b("v_sub_u32 v8, v8, v9")
    b("s_lshl_b32 s%d, s%d, 4" % (T0, sW))
    b("v_add_u32 v8, s%d, v8" % T0)
    for kb in range(4):
        for r in range(4):
            m = sM + 2 * (4 * kb + r)
            b("v_cmp_le_i32 s[%d:%d], %d, v8" % (m, m + 1, 16 * kb + r))
    b("v_mov_b32 v%d, 0xff800000" % vNI)
    b("v_and_b32 v9, 3, v0")
    b("v_cmp_eq_u32 vcc, 0, v9")
    b("v_mov_b32 v9, 0x3f803f80")
    for k in range(0, 16, 2): b("v_mov_b64 %s, 0" % vr(CI(0) + k, 2))
    b("v_cndmask_b32 v9, 0, v9, vcc")
    b("s_mov_b32 s%d, 0" % sRedo)
    for k in range(4): b("v_accvgpr_write_b32 %s, v9" % reg(ONES + k))
    weave(a, b, kvg[12:], 0.0, 0.95)
    stamp(a, 6)
    a.label("Lp3")
    def zset(z, qb, half, masked=True):
        out = []
        for k in range(8):
            m = sM + 2 * (8 * half + k)
            if masked: out.append("v_cndmask_b32 v%d, v%d, v%d, s[%d:%d]" % (z + k, vNI, CI(qb), m, m + 1))
            else: out.append("v_mov_b32 v%d, v%d" % (z + k, CI(qb)))
        return out
    def rdK(half): return ["ds_read_b128 %s, v%d offset:%d" % (reg(KF(n), 4), vRD, 16384 + (8 * half + n) * 1024) for n in range(8)]
    def rdV(half): return ["ds_read_b128 %s, v%d offset:%d" % (reg(VF(n), 4), vRD, (8 * half + n) * 1024) for n in range(8)]
    a("v_mov_b32 v%d, v%d" % (vRD, vL16))
    a("s_waitcnt vmcnt(24)")
    a("s_barrier")
    for x in rdK(0): a(x)
    a("s_mov_b32 s%d, 0" % sSlot)
    a("s_mov_b32 s%d, 0" % sBad)
    for x in zset(ZA, 0, 0, False): a(x)
    a("s_cmp_lg_u32 s%d, 0" % sI)
    a("s_cbranch_scc1 Lz0")
    for x in zset(ZA, 0, 0): a(x)
    a.label("Lz0")
    for x in zset(ZB, 0, 1): a(x)
    for k in range(16): a("v_accvgpr_write_b32 %s, 0" % reg(LA_(0) + k))
    for k in range(0, 64, 2): a("v_mov_b64 %s, 0" % vr(OA(0, 0) + k, 2))
    def qk(qs, buf, z):
        mf = []
        for kb in range(2):
            for s in range(4):
                for qb in qs:
                    d = SB(buf, qb, kb)
                    c = d if s else (z + 4 * kb if (z is not None and qb == qs[0]) else CI(qb))
                    mf.append(mfma(d, KF(4 * kb + s), QF(qb, s), c))
        return mf
    def pv(qs, buf):
        mf = []
        for db in range(8):
            for qb in (qs if db % 2 == 0 else qs[::-1]):
                mf.append(mfma(OA(qb, db), VF(db), SB(buf, qb, 0), OA(qb, db)))
        for qb in qs: mf.append(mfma(LA_(qb), ONES, SB(buf, qb, 0), LA_(qb)))
        return mf
    def units(qs, buf, kb):
        g = []
        for qb in qs:
            s, p = SB(buf, qb, kb), SB(buf, qb, 0) + 2 * kb
            g += [["v_exp_f32 v%d, v%d" % (s + r, s + r)] for r in range(4)]
            g.append(["v_cvt_pk_bf16_f32 v%d, v%d, v%d" % (p, s, s + 1), "v_cvt_pk_bf16_f32 v%d, v%d, v%d" % (p + 1, s + 2, s + 3)])
        return g
    SHIFT = {4: 0, 3: 0, 2: 3, 1: 4, 0: 0}
    LG = "s_waitcnt lgkmcnt(0)"
    def part(mf, un, rd, dm, extra=(), head=(), tail=(), last=(), quiet=False, late=()):
        n = len(mf)
        ex = [list(extra[k:k + 2]) for k in range(0, len(extra), 2)]
        lt = [list(late)] if late else []
        room = n - 1 - len(un) - len(dm) - len(ex) - len(lt)
        npair = min(max(len(rd) - room, 0), len(rd) // 2)
        rg = [rd[2 * k:2 * k + 2] for k in range(npair)] + [[x] for x in rd[2 * npair:]]
        if n == 0:
            for g in rg + un:
                for x in g: a(x)
                a("s_nop 0")
            for x in list(head) + list(tail) + list(last): a(x)
            return
        mem = [(0.70 * k / len(rg), g) for k, g in enumerate(rg)]
        val = [(0.02 + 0.90 * k / len(un), g) for k, g in enumerate(un)]
        val += [(0.05 + 0.85 * k / len(ex), g) for k, g in enumerate(ex)]
        val += [(0.80, g) for g in lt]
        if quiet:
            mem += [(0.70 * (k + 0.6) / len(dm), [ld]) for k, (pre, ld) in enumerate(dm)]
            gaps = spread(len(mem), mem)
            rest = spread(n - 1 if len(val) <= n - 1 - len(mem) else n, val, len(mem))
            gaps = gaps + rest[len(mem):]
            gaps += [[] for _ in range(n - len(gaps))]
        else:
            mem += [(0.30 + 0.60 * k / len(dm), [ld]) for k, (pre, ld) in enumerate(dm)]
            groups = mem + val
            gaps = spread(n - 1, groups) + [[]] if len(groups) <= n - 1 else spread(n, groups)
        lo = 0
        for x in head: lo = ride(gaps, x, lo, n - 1, False)
        prev = -1
        for pre, ld in dm:
            g = [k for k in range(prev + 1, n) if ld in gaps[k]][0]
            hi = g - 1
            for x in reversed(pre): hi = max(ride(gaps, x, prev + 1, hi, True) - 1, prev + 1)
            prev = g
        lo = max(prev + 1, n - 3 - 2 * len(tail))
        for x in tail: lo = ride(gaps, x, min(lo, n - 2), n - 2, False)
        if gaps[n - 1] and gaps[n - 1][-1].startswith("v_cvt") and len(last) < 2: gaps[n - 1].append("s_nop 0")
        gaps[n - 1] += list(last)
        stream(a, mf, gaps)
    adv_s = ["s_add_u32 s%d, s%d, 0x8000" % (sSlot, sSlot), "s_and_b32 s%d, s%d, 0x18000" % (sSlot, sSlot)]
    adv_v = ["v_or_b32 v%d, s%d, v%d" % (vRD, sSlot, vL16)]
    def trip(cur, nxt, zb, xa=(), xb=(), xc=(), dma=True, vm_next=16, loop=None, mid=()):
        d = []
        if dma:
            for k in range(8):
                pre = ["s_add_u32 s%d, s%d, 4096" % (sKo, sKo), "s_add_u32 m0, s%d, 4096" % sKm] if k == 4 else []
                d.append((pre, kv_ld((k & 3) * 1024)))
        cut = [0, 2, 4, 6, 8] if len(cur) > 2 else [0, 4, 7, 8, 8]
        if not dma: cut = [0] * 5
        dtail = ["s_add_u32 s%d, s%d, %d" % (sKo, sKo, 32768 - 4096), "s_add_u32 s%d, s%d, 0x8000" % (sKm, sKm),
                 "s_and_b32 s%d, s%d, 0x1ffff" % (sKm, sKm), "s_mov_b32 m0, s%d" % sKm] if dma else []
        l2, t2 = [LG], []
        if loop:
            t2 = ["s_sub_u32 s%d, s%d, 1" % (sCnt, sCnt), "s_cmp_eq_u32 s%d, 0" % sCnt]
            l2 = [LG, "s_cbranch_scc1 %s_m" % loop, "%s_r:" % loop]
        part(qk(cur, 1, ZB if zb else None), units(cur, 0, 1)[SHIFT[len(cur)]:], rdV(0), d[cut[0]:cut[1]], last=[LG], quiet=True)
        part(pv(cur, 0), units(cur, 1, 0), rdK(0) if nxt else [], d[cut[1]:cut[2]], extra=xa, tail=t2, last=l2)
        part(qk(nxt, 0, ZA) if nxt else [], units(cur, 1, 1), rdV(1), d[cut[2]:cut[3]], extra=xb, head=adv_s if nxt else [], last=[LG] if nxt else [LG] + list(mid))
        if nxt:
            last = ["s_waitcnt vmcnt(%d) lgkmcnt(0)" % vm_next, "s_barrier"]
            tl = list(dtail)
            if loop:
                tl.append("s_cmp_lg_u32 s%d, 0" % sCnt)
                last.append("s_cbranch_scc1 %s" % loop)
            part(pv(cur, 1), units(nxt, 0, 0) + units(nxt, 0, 1)[:SHIFT[len(nxt)]], rdK(1), d[cut[3]:cut[4]], extra=xc, late=adv_v, tail=tl, last=last)
    BSZ, STG = 4 * 5152, 4 * 5152 + 16384
    vBo = [240, 241, 242, 243, 244]
    vRA, vRB0, vRB1, vXo = 245, 246, 247, 248
    sKQ, sRT, sCT = 6, 7, 8
    sA4, sB4, sSl, sSd = 9, 10, 11, 12
    sAmD = [18, 19, 20, 21]
    x4 = L()
    x4("v_lshrrev_b32 v250, 4, v0")
    x4("v_bfe_u32 v251, v0, 2, 2")
    x4("v_and_b32 v252, 3, v0")
    x4("v_mul_u32_u24 v249, 1280, v251")
    x4("v_lshl_add_u32 v249, v252, 4, v249")
    for e in range(5):
        x4("v_add_u32 v253, %d, v250" % (4 * e))
        x4("v_mul_u32_u24 v254, 52, v253")
        x4("v_lshrrev_b32 v254, 8, v254")
        x4("v_mul_u32_u24 v255, 5, v254")
        x4("v_sub_u32 v253, v253, v255")
        x4("v_lshl_add_u32 v%d, v253, 6, v249" % vBo[e])
        x4("v_and_b32 v255, 1, v254")
        x4("v_lshrrev_b32 v254, 1, v254")
        x4("v_lshl_add_u32 v254, v255, 1, v254")
        x4("v_mul_u32_u24 v254, %d, v254" % (8 * 1280))
        x4("v_add_u32 v%d, v%d, v254" % (vBo[e], vBo[e]))
    x4("v_lshlrev_b32 v%d, 3, v252" % vRB0)
    x4("v_lshl_add_u32 v%d, v251, 6, v%d" % (vRB0, vRB0))
    x4("v_and_b32 v253, 1, v250")
    x4("v_mul_u32_u24 v253, 5152, v253")
    x4("v_lshrrev_b32 v254, 1, v250")
    x4("v_mul_u32_u24 v254, 2560, v254")
    x4("v_add3_u32 v%d, v%d, v253, v254" % (vRB0, vRB0))
    x4("v_and_b32 v253, 15, v0")
    x4("v_mul_u32_u24 v253, 1280, v253")
    x4("v_lshl_add_u32 v%d, v250, 3, v253" % vXo)
    a(LG)
    zi = ["v_mov_b32 v%d, 0" % (OA(2, 0) + k) for k in range(64)]
    stream(a, qk([0, 1, 2, 3], 0, ZA), [zi[2 * k:2 * k + 2] for k in range(32)])
    for x in rdK(1): a(x)
    for x in adv_s: a(x)
    for g in units([0, 1, 2, 3], 0, 0):
        if len(g) == 2: a("s_nop 0")
        for x in g: a(x)
    for x in adv_v: a(x)
    a("s_lshl_b32 s%d, s%d, 1" % (sCnt, sI))
    a("v_mov_b32 v8, 1")
    a("s_waitcnt vmcnt(16) lgkmcnt(0)")
    a("s_barrier")
    a("s_cmp_lg_u32 s%d, 0" % sW)
    a("s_cbranch_scc1 Lph_np")
    a("s_mov_b64 exec, 1")
    a("buffer_store_dword v8, off, %s, s%d offset:1024 sc1" % (R(RF), sFW))
    a("s_mov_b64 exec, -1")
    a("Lph_np:")
    stamp(a, 7)
    a("s_cmp_eq_u32 s%d, 0" % sI)
    a("s_cbranch_scc1 Lt43")
    a(".p2align 6")
    a.label("Lt44")
    trip([0, 1, 2, 3], [0, 1, 2, 3], False, loop="Lt44")
    a.label("Lt43")
    trip([0, 1, 2, 3], [1, 2, 3], True, xa=zset(ZA, 1, 0) + x4[:8], xc=zset(ZB, 1, 1) + x4[8:26])
    for x in zset(ZA, 2, 0, False): a(x)
    a("s_cmp_lg_u32 s%d, 7" % sI)
    a("s_cbranch_scc1 Lt32")
    for x in zset(ZA, 2, 0): a(x)
    a.label("Lt32")
    trip([1, 2, 3], [2, 3], True, xa=x4[26:36], xc=zset(ZB, 2, 1) + x4[36:40])
    stamp(a, 8)
    def finish(qs, groups=(), lo=0.0, hi=1.0, pre=()):
        b = L()
        b.extend(pre)
        for k, qb in enumerate(qs): b("v_accvgpr_read_b32 v%d, %s" % (8 + 2 * k, reg(LA_(qb))))
        b("s_mov_b32 s%d, %s" % (T0, fh(2.0 ** 40)))
        b("v_min_f32 v6, v8, v10")
        b("v_add_f32 v7, v8, v10")
        b("v_cmp_nle_f32 vcc, %s, v6" % fh(2.0 ** -30))
        b("v_cmp_nge_f32 s[%d:%d], s%d, v7" % (T2, T3, T0))
        b("v_rcp_f32 v8, v8")
        b("v_rcp_f32 v10, v10")
        for x in b: a(x)
        a("s_or_b64 vcc, vcc, s[%d:%d]" % (T2, T3))
        a("s_cselect_b32 s%d, 1, s%d" % (sBad, sBad))
        b = L()
        for k, qb in enumerate(qs):
            for s in range(4):
                for r in range(0, 8, 2):
                    r0 = OA(qb, 2 * s) + r
                    b("v_pk_mul_f32 %s, %s, %s op_sel_hi:[1,0]" % (vr(r0, 2), vr(r0, 2), vr(8 + 2 * k, 2)))
                b("s_add_u32 s%d, s%d, %d" % (T0, sAc[qb >> 1], (qb & 1) * 4096 + s * 8192))
                d = pack_pair(b, OA(qb, 2 * s), OA(qb, 2 * s + 1), None)
                b("buffer_store_dwordx4 %s, v%d, %s, s%d offen%s" % (vr(d, 4), vL16, R(rCX), T0, SC))
        weave(a, b, list(groups), lo, hi)
    a("v_lshlrev_b32 v9, 7, v0")
    if not OPT.get("notouch4"):
        a("s_lshl_b32 s%d, s2, 2" % T0)
        a("s_add_u32 s%d, s%d, s%d" % (T0, T0, sW))
        a("s_cmp_lt_u32 s%d, 640" % T0)
        a("s_cselect_b32 s%d, s%d, s%d" % (R3, sWO, sWD))
        a("s_cselect_b32 s%d, s%d, s%d" % (R3 + 1, sWO + 1, sWD + 1))
        a("s_mov_b32 s%d, 0x%x" % (T1, 4096 * 1280))
        a("s_cselect_b32 s%d, s%d, 0x%x" % (R3 + 2, T1, 1728 * 1280))
        a("s_cselect_b32 s%d, 0, 640" % T1)
        a("s_sub_u32 s%d, s%d, s%d" % (T0, T0, T1))
        a("s_lshl_b32 s%d, s%d, 13" % (T0, T0))
        a("buffer_load_dword v3, v9, %s, s%d offen" % (R(R3), T0))
    a("s_bfe_u32 s%d, s2, 0x20001" % sKQ)
    a("s_and_b32 s%d, s2, 1" % T0)
    a("s_lshl_b32 s%d, s%d, 3" % (T0, T0))
    a("s_add_u32 s%d, s%d, s%d" % (sRT, T0, sI))
    a("s_bfe_u32 s%d, s2, 0x20003" % sCT)
    srd(a, R3, sX, size=XN_SZ)
    a("s_lshr_b32 s%d, s%d, 1" % (T0, sW))
    a("s_lshl_b32 s%d, s%d, 1" % (T1, sRT))
    a("s_add_u32 s%d, s%d, s%d" % (T1, T1, T0))
    a("s_lshl_b32 s%d, s%d, 2" % (T1, T1))
    a("s_add_u32 s%d, s%d, s%d" % (T1, T1, sKQ))
    a("s_mul_i32 s%d, s%d, %d" % (T1, T1, 16 * 1280))
    a("s_lshl_b32 s%d, s%d, 12" % (T0, T0))
    a("s_add_u32 s%d, s%d, %d" % (T0, T0, BSZ))
    for x in x4[40:]: a(x)
    a("v_add_u32 v%d, s%d, v%d" % (vRA, T0, vL16))
    a("s_and_b32 s%d, s%d, 1" % (T0, sW))
    a("s_lshl_b32 s%d, s%d, 1" % (T2, sCT))
    a("s_add_u32 s%d, s%d, s%d" % (T2, T2, T0))
    a("s_mul_i32 s%d, s%d, 160" % (T2, T2))
    a("s_add_u32 s13, s%d, s%d" % (T1, T2))
    a("s_mul_i32 s%d, s%d, 736" % (T1, T0))
    a("v_add_u32 v%d, s%d, v%d" % (vRB1, T1, vRB0))
    a("s_mul_i32 s%d, s%d, 544" % (T1, T0))
    a("v_add_u32 v%d, s%d, v%d" % (vRB0, T1, vRB0))
    xl = [["buffer_load_dwordx2 %s, v%d, %s, s13 offen offset:%d" % (vr(80 + 2 * nb, 2), vXo, R(R3), nb * 32)] for nb in range(5)]
    finish([0, 1], xl)
    a("s_lshl_b32 s%d, s%d, 2" % (sCnt, sI))
    a("s_sub_u32 s%d, 28, s%d" % (sCnt, sCnt))
    a("s_cmp_eq_u32 s%d, 0" % sCnt)
    a("s_cbranch_scc1 Lt21")
    a(".p2align 6")
    a.label("Lt22")
    trip([2, 3], [2, 3], False, loop="Lt22")
    a.label("Lt21")
    stamp(a, 9)
    pollF = "buffer_load_dwordx4 v[48:51], v%d, %s, 0 offen offset:1024 sc1" % (vL16, R(RF))
    a(pollF)
    trip([2, 3], [3], True, xa=zset(ZA, 3, 0), xc=zset(ZB, 3, 1), dma=False, vm_next=0)
    trip([3], [], True, dma=False, mid=["s_barrier"])
    rA4, rB4 = R1, R3
    b = L()
    b("s_mul_i32 s%d, s%d, %d" % (T0, sRT, HB_RT))
    srd(b, rA4, sWS, HB_OFF, HB_RT, T0)
    srd(b, rB4, sWD, size=1728 * 1280)
    def k_start(o_, per):
        o_("s_mul_i32 s%d, s%d, %d" % (T0, sKQ, 2 * per))
        o_("s_add_u32 s%d, s%d, s%d" % (T0, T0, sW))
        o_("s_lshl_b32 s%d, s%d, 12" % (sA4, T0))
        o_("s_lshr_b32 s%d, s%d, 1" % (T1, T0))
        o_("s_lshl_b32 s%d, s%d, 3" % (T1, T1))
        o_("s_and_b32 s%d, s%d, 1" % (T0, sW))
        o_("s_add_u32 s%d, s%d, s%d" % (T1, T1, T0))
        o_("s_mul_i32 s%d, s%d, 5120" % (T1, T1))
        o_("s_mul_i32 s%d, s%d, 320" % (T0, sCT))
        o_("s_add_u32 s%d, s%d, s%d" % (sB4, T1, T0))
    k_start(b, 14)
    b("s_mul_i32 s%d, s%d, 5152" % (sSl, sW))
    b("s_mul_i32 s%d, s%d, %d" % (T1, sW, 5152 - 4096))
    for e in range(4):
        b("s_xor_b32 s%d, s%d, %d" % (T0, sKQ, e))
        b("s_lshl_b32 s%d, s%d, 10" % (T0, T0))
        b("s_add_u32 s%d, s%d, %d" % (T0, T0, BSZ - e * 1024))
        b("s_sub_u32 s%d, s%d, s%d" % (sAmD[e], T0, T1))
    pvl = pv([3], 1)
    stream(a, pvl, [b[6 * k:6 * k + 6] for k in range(8)] + [b[48:]])
    spin(a, ool, pollF, [48, 49, 50, 51], "1", "fh")
    def dma4():
        out = []
        for e in range(5):
            out.append((["s_add_u32 m0, s%d, %d" % (sSl, e * 1024)], "buffer_load_dwordx4 v%d, %s, s%d offen lds" % (vBo[e], R(rB4), sB4)))
        for e in range(4):
            out.append((["s_add_u32 m0, s%d, s%d" % (sSl, sAmD[e])], "buffer_load_dwordx4 v%d, %s, s%d offen offset:%d%s lds" % (vL16, R(rA4), sA4, e * 1024, SC)))
        return out, ["s_add_u32 s%d, s%d, 16384" % (sA4, sA4), "s_add_u32 s%d, s%d, %d" % (sB4, sB4, 64 * 1280)]
    def stage_groups():
        l, t = dma4()
        return flat_dma(l, t + ["s_add_u32 s%d, s%d, %d" % (sSl, sSl, STG)])
    for g in stage_groups():
        for x in g: a(x)
    stamp(a, 10)
    finish([2, 3])
    ACC = lambda nb, rb: 16 + 20 * rb + 4 * nb
    F4 = lambda st, n: A(148 + 36 * st + 4 * n)
    b = L()
    b("v_mov_b32 v6, s%d" % sBad)
    b("s_lshl_b32 s%d, s%d, 2" % (T2, sW))
    b("s_add_u32 s%d, s%d, %d" % (T2, T2, LFLAG))
    b("v_mov_b32 v7, s%d" % T2)
    b("ds_write_b32 v7, v6")
    b("v_mov_b32 v7, %d" % LFLAG)
    for k in range(10):
        b("v_lshlrev_b32 v%d, 16, v%d" % (16 + 2 * k, 80 + k))
        b("v_and_b32 v%d, 0xffff0000, v%d" % (17 + 2 * k, 80 + k))
    for k in range(36, 96, 2): b("v_mov_b64 %s, 0" % vr(k, 2))
    weave(a, b, stage_groups() + stage_groups())
    def rd4(st, ks):
        g = [["ds_read_b128 %s, v%d offset:%d" % (reg(F4(st, rb), 4), vRA, ks * 8192 + rb * 1024) for rb in (2 * k, 2 * k + 1)] for k in range(2)]
        for nb in range(5):
            off = ks * 10304 + (nb >> 1) * 256 + (nb & 1) * 32
            v = vRB1 if nb & 1 else vRB0
            g.append(["ds_read_b64_tr_b16 %s, v%d offset:%d" % (reg(F4(st, 4 + nb) + 2 * j, 2), v, off + j * 1280) for j in range(2)])
        return [g[2], g[0], g[1], g[3], g[4], g[5], g[6]]
    def mf4(st, rbs=(0, 1, 2, 3), rb_major=False):
        if rb_major: return [mfma(ACC(nb, rb), F4(st, 4 + nb), F4(st, rb), ACC(nb, rb)) for rb in rbs for nb in range(5)]
        return [mfma(ACC(nb, rb), F4(st, 4 + nb), F4(st, rb), ACC(nb, rb)) for nb in range(5) for rb in (rbs if nb % 2 == 0 else rbs[::-1])]
    a("s_mov_b32 s%d, 0" % sCnt)
    a("s_waitcnt vmcnt(26) lgkmcnt(0)")
    a("s_barrier")
    a("ds_read_b128 v[8:11], v7")
    for g in rd4(0, 0):
        for x in g: a(x)
    l4, t4 = dma4()
    a("s_waitcnt lgkmcnt(14)")
    a("v_or3_b32 v8, v8, v9, v10")
    a("v_or_b32 v8, v8, v11")
    a("s_nop 0")
    a("v_readfirstlane_b32 s%d, v8" % T0)
    a("s_nop 1")
    a("s_cmp_gt_u32 s%d, s%d" % (T0, sRedo))
    a("s_cbranch_scc1 Lredo")
    sEv4 = 64
    a("s_mov_b32 s%d, 1" % sEv4)
    for g in flat_dma(l4[:5]):
        for x in g: a(x)
    a(LG)
    stamp(a, 11)
    a("s_branch Lp4a")
    def part4(st, rd, dm, tail, vtail, last):
        gaps = [[] for _ in range(20)]
        for k, g in enumerate(rd): gaps[(0, 3, 6, 8, 10, 12, 14)[k]] += g
        for k, (pre, ld) in enumerate(dm):
            p = (1, 4, 7, 11, 15)[k]
            gaps[p] += pre
            gaps[(2, 5, 9, 13, 16)[k]].append(ld)
        gaps[17] += tail[:3]; gaps[18] += tail[3:] + vtail
        gaps[19] += last
        stream(a, mf4(st), gaps)
    a(".p2align 6")
    a.label("Lp4b")
    a("s_cmp_eq_u32 s%d, s%d" % (sCnt, sEv4))
    a("s_cbranch_scc1 Lp4evt")
    a.label("Lp4ret")
    part4(1, rd4(0, 0), l4[:5], [], [], [LG])
    a.label("Lp4a")
    gaps = [[] for _ in range(20)]
    for k, g in enumerate(rd4(1, 1)): gaps[(0, 3, 6, 8, 10, 12, 13)[k]] += g
    for k, (pre, ld) in enumerate(l4[5:]):
        gaps[(1, 4, 7, 9)[k]] += pre if k < 3 else []
        gaps[(2, 5, 9, 14)[k]].append(ld)
    gaps[11] += l4[8][0] + ["s_and_b32 s%d, s%d, 3" % (T0, sCnt), "s_cselect_b32 s%d, %d, 0x%x" % (T1, 0, (-4 * STG) & 0xFFFFFFFF)]
    gaps[1] += ["s_add_u32 s%d, s%d, 1" % (T2, sCnt), "s_and_b32 s%d, s%d, 3" % (T0, T2)]
    gaps[4] = ["s_cselect_b32 s%d, %d, 0x%x" % (sSd, 0, (-4 * STG) & 0xFFFFFFFF), "s_add_u32 s%d, s%d, %d" % (sSd, sSd, STG)] + gaps[4]
    gaps[15] += t4 + ["s_add_u32 s%d, s%d, s%d" % (sSl, sSl, T1)]
    gaps[16] += ["s_add_u32 s%d, s%d, %d" % (sSl, sSl, STG), "v_add_u32 v%d, s%d, v%d" % (vRA, sSd, vRA), "v_add_u32 v%d, s%d, v%d" % (vRB0, sSd, vRB0)]
    gaps[17] += ["s_mov_b32 s%d, s%d" % (sCnt, T2), "v_add_u32 v%d, s%d, v%d" % (vRB1, sSd, vRB1)]
    gaps[18] += ["s_cmp_lt_u32 s%d, 23" % sCnt]
    gaps[19] += ["s_waitcnt vmcnt(18) lgkmcnt(0)", "s_barrier", "s_cbranch_scc1 Lp4b"]
    stream(a, mf4(0), gaps)
    stamp(a, 12)
    o("Lp4evt:")
    o("s_cmp_eq_u32 s%d, 1" % sCnt)
    o("s_cbranch_scc0 Lp4e4")
    o("s_mov_b32 s%d, 4" % sEv4)
    publish(o, sFW, 2048, "pc")
    o("s_branch Lp4ret")
    o("Lp4e4:")
    o("s_sub_u32 s%d, 15, s%d" % (T0, sRT))
    o("s_min_u32 s%d, s%d, s%d" % (T0, T0, sRT))
    o("s_lshl_b32 s%d, s%d, 2" % (T0, T0))
    o("s_add_u32 s%d, s%d, s%d" % (T0, T0, sKQ))
    o("s_lshl_b32 s%d, s%d, 5" % (T2, T0))
    o("v_and_b32 v13, 7, v0")
    o("v_lshlrev_b32 v13, 2, v13")
    spin(o, None, "buffer_load_dword v12, v13, %s, s%d offen offset:2048 sc1" % (R(RF), T2), [12], "1", "fc", first=False)
    o("s_lshl_b32 s%d, s%d, 20" % (T0, sRT))
    o("s_add_u32 s%d, s%d, 1" % (T1, sKQ))
    o("s_lshl_b32 s%d, s%d, 18" % (T2, T1))
    srd(o, rA4, sWS, CX_OFF, "s%d" % T2, T0)
    o("s_mul_i32 s%d, s%d, %d" % (T2, T1, 1024 * 1280))
    srd(o, rB4, sWO, size="s%d" % T2)
    k_start(o, 32)
    o("s_branch Lp4ret")
    rE, rOut = R0, R2
    b = L()
    srd(b, rE, sWS, EX_OFF, EX_SZ)
    srd(b, rOut, sOUT, size=XN_SZ)
    sEx = [65, 66, 67]
    b("s_lshl_b32 s%d, s%d, 2" % (T0, sRT))
    b("s_add_u32 s%d, s%d, s%d" % (T0, T0, sCT))
    b("s_lshl_b32 s%d, s%d, 2" % (T0, T0))
    b("s_mul_i32 s%d, s%d, 5120" % (T2, sW))
    for d in (1, 2, 3):
        b("s_xor_b32 s%d, s%d, %d" % (T1, sKQ, d))
        b("s_add_u32 s%d, s%d, s%d" % (T1, T1, T0))
        b("s_mul_i32 s%d, s%d, %d" % (T1, T1, 3 * 20480))
        b("s_add_u32 s%d, s%d, s%d" % (T1, T1, T2))
        b("s_add_u32 s%d, s%d, %d" % (sEx[d - 1], T1, (d - 1) * 20480))
    b("s_add_u32 s%d, s%d, s%d" % (T1, T0, sKQ))
    b("s_mul_i32 s%d, s%d, %d" % (T1, T1, 3 * 20480))
    b("s_add_u32 s68, s%d, s%d" % (T1, T2))
    b("s_add_u32 s69, s68, 20480")
    b("s_add_u32 s70, s69, 20480")
    gaps = [b[3 * k:3 * k + 3] for k in range(12)] + [[] for _ in range(8)]
    assert len(b) <= 36
    gaps[12] += ["v_add_u32 v%d, 4096, v%d" % (vRA, vL16)]
    def ex_st(d, nb): return "buffer_store_dwordx4 %s, v%d, %s, s%d offen offset:%d sc1" % (vr(ACC(nb, d), 4), vRA if nb == 4 else vL16, R(rE), sEx[d - 1], (nb & 3) * 1024)
    sts = [ex_st(d, nb) for d in (1, 2, 3) for nb in range(5)]
    for k in range(7): gaps[13 + k].append(sts[k])
    stream(a, mf4(1, (1, 2, 3, 0), True), gaps)
    for x in sts[7:]: a(x)
    a("s_and_b32 s%d, s2, 0xf9" % T0)
    a("v_and_b32 v13, 3, v0")
    a("v_lshlrev_b32 v13, 3, v13")
    a("s_lshl_b32 s%d, s%d, 2" % (T2, T0))
    a("v_and_b32 v5, 15, v0")
    a("v_mul_u32_u24 v5, 176, v5")
    a("v_lshrrev_b32 v6, 4, v0")
    a("v_lshl_add_u32 v5, v6, 3, v5")
    a("s_mul_i32 s%d, s%d, %d" % (T0, sW, 16 * 176))
    a("s_add_u32 s%d, s%d, %d" % (T0, T0, 4 * STG))
    a("v_add_u32 v5, s%d, v5" % T0)
    for n in range(3):
        a("v_add_u32 v6, %d, v0" % (64 * n))
        if n == 2: a("v_min_u32 v6, 159, v6")
        a("v_mul_u32_u24 v7, 6554, v6")
        a("v_lshrrev_b32 v7, 16, v7")
        a("v_mul_u32_u24 v9, 10, v7")
        a("v_sub_u32 v6, v6, v9")
        a("v_lshlrev_b32 v6, 4, v6")
        a("v_mul_u32_u24 v9, 1280, v7")
        a("v_add_u32 v%d, v9, v6" % (160 + n))
        a("v_mul_u32_u24 v9, 176, v7")
        a("v_add3_u32 v%d, v9, v6, s%d" % (164 + n, T0))
    a("s_waitcnt vmcnt(0)")
    a("s_barrier")
    publish(a, sFW, 3072, "px")
    stamp(a, 13)
    spin(a, None, "buffer_load_dword v12, v13, %s, s%d offen offset:3072 sc1" % (R(RF), T2), [12], "1", "fx", first=False)
    stamp(a, 14)
    for d in range(3):
        for nb in range(5):
            a("buffer_load_dwordx4 %s, v%d, %s, s%d offen offset:%d sc1" % (vr(96 + 20 * d + 4 * nb, 4), vRA if nb == 4 else vL16, R(rE), 68 + d, (nb & 3) * 1024))
    for d in range(3):
        a("s_waitcnt vmcnt(%d)" % (10 - 5 * d))
        for k in range(0, 20, 2): a("v_pk_add_f32 %s, %s, %s" % (vr(16 + k, 2), vr(16 + k, 2), vr(96 + 20 * d + k, 2)))
    for nb in range(5):
        a("v_cvt_pk_bf16_f32 v%d, v%d, v%d" % (36 + 2 * nb, 16 + 4 * nb, 17 + 4 * nb))
        a("v_cvt_pk_bf16_f32 v%d, v%d, v%d" % (37 + 2 * nb, 18 + 4 * nb, 19 + 4 * nb))
        a("ds_write_b64 v5, %s offset:%d" % (vr(36 + 2 * nb, 2), nb * 32))
    for n in range(3): a("ds_read_b128 %s, v%d" % (vr(48 + 4 * n, 4), 164 + n))
    for n in range(3):
        a("s_waitcnt lgkmcnt(%d)" % (2 - n))
        if n == 2: a("s_mov_b32 exec_hi, 0")
        a("buffer_store_dwordx4 %s, v%d, %s, s13 offen" % (vr(48 + 4 * n, 4), 160 + n, R(rOut)))
    if STAMP:
        a("s_mov_b64 exec, -1")
        a("s_waitcnt vmcnt(0)")
    stamp(a, 15)
    stamp_out(a)
    a.label("Lend")
    a("s_endpgm")
    a.label("Lredo")
    a("s_mov_b32 s%d, 1" % sRedo)
    a("s_waitcnt vmcnt(0) lgkmcnt(0)")
    a("s_barrier")
    a("v_and_b32 v8, 15, v0")
    a("v_lshrrev_b32 v9, 4, v0")
    a("v_lshlrev_b32 v9, 2, v9")
    a("v_sub_u32 v8, v8, v9")
    a("s_lshl_b32 s%d, s%d, 4" % (T0, sW))
    a("v_add_u32 v8, s%d, v8" % T0)
    a("s_lshl_b32 s%d, s%d, 7" % (T0, sI))
    a("s_sub_u32 s%d, %d, s%d" % (T1, 15 * 128, T0))
    for qb in range(4):
        a("s_add_u32 s%d, s%d, %d" % (T2, T0 if qb < 2 else T1, 64 * (qb & 1)))
        a("v_add_u32 v%d, s%d, v8" % (240 + qb, T2))
        a("v_mov_b32 v%d, v%d" % (244 + qb, vNI))
    a("s_mov_b32 s%d, 0" % sCnt)
    a.label("Lmx")
    a("s_lshr_b32 s%d, s%d, 6" % (T0, sCnt))
    a("s_lshl_b32 s%d, s%d, 15" % (T0, T0))
    a("s_and_b32 s%d, s%d, 63" % (T1, sCnt))
    a("s_lshl_b32 s%d, s%d, 8" % (T1, T1))
    a("s_add_u32 s%d, s%d, s%d" % (T0, T0, T1))
    for s in range(4):
        a("buffer_load_dwordx4 %s, v%d, %s, s%d offen offset:%d%s" % (reg(KF(s), 4), vL16, R(rKV), T0, s * 1024, SC))
    a("s_waitcnt vmcnt(0)")
    for qb in range(4):
        for s in range(4): a(mfma(SB(0, qb, 0), KF(s), QF(qb, s), SB(0, qb, 0) if s else None))
    a("s_nop 7")
    for r in range(4):
        a("s_add_u32 s%d, s%d, %d" % (T0, sCnt, r))
        for qb in range(4):
            a("v_cmp_le_i32 vcc, s%d, v%d" % (T0, 240 + qb))
            a("s_nop 1")
            a("v_cndmask_b32 v9, v%d, v%d, vcc" % (vNI, SB(0, qb, 0) + r))
            a("v_max_f32 v%d, v%d, v9" % (244 + qb, 244 + qb))
    a("s_add_u32 s%d, s%d, 16" % (sCnt, sCnt))
    a("s_lshr_b32 s%d, s%d, 9" % (T0, rKV + 2))
    a("s_cmp_lt_u32 s%d, s%d" % (sCnt, T0))
    a("s_cbranch_scc1 Lmx")
    for qb in range(4):
        for sw in ("16", "32"):
            a("v_mov_b32 v9, v%d" % (244 + qb))
            a("s_nop 1")
            a("v_permlane%s_swap_b32 v%d, v9" % (sw, 244 + qb))
            a("v_max_f32 v%d, v%d, v9" % (244 + qb, 244 + qb))
        for r in range(4): a("v_sub_f32 v%d, 0, v%d" % (CI(qb) + r, 244 + qb))
    for g in kv_first():
        for x in g: a(x)
    a("s_branch Lp3")
    for lp, qb in (("Lt44", 0), ("Lt22", 2)):
        a.label(lp + "_m")
        for x in zset(ZA, qb, 0): a(x)
        a("s_nop 0")
        a("s_branch %s_r" % lp)
    for x in ool: a(x)

def build():
    import subprocess, re, os
    txt = build1()
    open("_sz.s", "w").write(txt)
    subprocess.run(["clang", "-x", "assembler", "-target", "amdgcn-amd-amdhsa", "-mcpu=gfx950", "-c", "_sz.s", "-o", "_sz.o"], check=True)
    r = subprocess.run(["llvm-readelf", "-S", "_sz.o"], capture_output=True, text=True).stdout
    CODE[0] = int(re.search(r"\.text\s+PROGBITS\s+\S+\s+\S+\s+(\S+)", r).group(1), 16)
    return build1()

def build1():
    body = Asm()
    kernel(body)
    ref = open("cdna_kernels/%s.s.ref" % NAME).read().split("\n")
    head = [l for l in ref if l.startswith(";   offset") or l.startswith("; Kernarg")]
    out = "\n".join(head) + "\n"
    out += "; @launch grid=(256,1,1) block=(256,1,1) lds=%d\n" % LDS_TOTAL
    out += '.amdgcn_target "amdgcn-amd-amdhsa--gfx950"\n.text\n'
    out += body.text()
    out += '.section .rodata,"a"\n.p2align 6\n' + kernel_desc(KN, 512, 256)
    return out

if __name__ == "__main__":
    for x in list(sys.argv):
        if x.startswith("-D"):
            kv = x[2:].split("="); OPT[kv[0]] = kv[1] if len(kv) > 1 else "1"; sys.argv.remove(x)
    if "--stamp" in sys.argv:
        STAMP = True; sys.argv.remove("--stamp")
    txt = build()
    path = sys.argv[1] if len(sys.argv) > 1 else "cdna_kernels/%s.s" % NAME
    open(path, "w").write(txt)
    print("wrote", path, len(txt), "bytes")
```
